```python
import torch

def _softmax(x, axis=-1):
    return torch.softmax(x, dim=axis)

def _gelu(x):
    return torch.nn.functional.gelu(x, approximate='tanh')

def _silu(x):
    return torch.nn.functional.silu(x)

def _sigmoid(x):
    return torch.sigmoid(x)

def _layernorm(x, axis=-1, eps=1e-05):
    m = x.mean(dim=axis, keepdim=True)
    v = x.var(dim=axis, keepdim=True, unbiased=False)
    return (x - m) / torch.sqrt(v + eps)

def _scatter_add(tgt, idx, src, axis=0):
    return tgt.clone().index_add_(axis, idx, src)

def _segment_sum(src, seg, n):
    out = torch.zeros((n,) + src.shape[1:], dtype=src.dtype)
    return out.index_add_(0, seg, src)

def _pad(x, pw):
    flat = tuple((v for pair in reversed(pw) for v in pair))
    return torch.nn.functional.pad(x, flat)
kernel_name = 'gated_mix__ssm_conv_s4__mixer_gmlp__prompt'

def setup_inputs():

    _w = lambda a: (lambda t: t.to(torch.bfloat16) if t.is_floating_point() else t)(torch.as_tensor(a))

    def _A_setup():
        B, L, D, N = (1, 2048, 640, 192)
        A_re = -(lambda _x: torch.exp(torch.as_tensor(_x)))((lambda *s: torch.randn(*s, dtype=torch.bfloat16) * 3.2)(D, N))
        A_im = torch.pi * (lambda *s: torch.randn(*s, dtype=torch.bfloat16) * 0.1)(D, N)
        B_re = (lambda *s: torch.randn(*s, dtype=torch.bfloat16) * 0.8)(D, N)
        B_im = (lambda *s: torch.randn(*s, dtype=torch.bfloat16) * 0.8)(D, N)
        C_re = (lambda *s: torch.randn(*s, dtype=torch.bfloat16) * 0.8)(D, N)
        C_im = (lambda *s: torch.randn(*s, dtype=torch.bfloat16) * 0.8)(D, N)
        log_dt = (lambda *s: torch.randn(*s, dtype=torch.bfloat16) * 0.1)(D) * 0.5 - 4.0
        Dskip = (lambda *s: torch.randn(*s, dtype=torch.bfloat16) * 0.8)(D)
        return {'u': _w((lambda *s: torch.randn(*s, dtype=torch.bfloat16) * 0.05)(B, L, D)), 'A_re': _w(A_re), 'A_im': _w(A_im), 'B_re': _w(B_re), 'B_im': _w(B_im), 'C_re': _w(C_re), 'C_im': _w(C_im), 'log_dt': _w(log_dt), 'Dskip': _w(Dskip)}
    _A_in = _A_setup()

    def _B_setup():
        B, S, D, F = (1, 2048, 640, 1536)
        Fh = F // 2
        return {'x': _w((lambda *s: torch.randn(*s, dtype=torch.bfloat16) * 0.05)(B, S, D)), 'w_in': _w((lambda *s: torch.randn(*s, dtype=torch.bfloat16) * 0.4)(D, 2 * Fh)), 'w_sp': _w(0.01 * (lambda *s: torch.randn(*s, dtype=torch.bfloat16) * 0.4)(S, S)), 'b_sp': _w(1.0 + 0.01 * (lambda *s: torch.randn(*s, dtype=torch.bfloat16) * 0.05)(S)), 'w_out': _w((lambda *s: torch.randn(*s, dtype=torch.bfloat16) * 0.05)(Fh, D))}
    _B_in = _B_setup()
    return {'A_u': _A_in['u'], 'A_A_re': _A_in['A_re'], 'A_A_im': _A_in['A_im'], 'A_B_re': _A_in['B_re'], 'A_B_im': _A_in['B_im'], 'A_C_re': _A_in['C_re'], 'A_C_im': _A_in['C_im'], 'A_log_dt': _A_in['log_dt'], 'A_Dskip': _A_in['Dskip'], 'B_x': _B_in['x'], 'B_w_in': _B_in['w_in'], 'B_w_sp': _B_in['w_sp'], 'B_b_sp': _B_in['b_sp'], 'B_w_out': _B_in['w_out'], 'gate_w': _w((lambda *s: torch.randn(*s, dtype=torch.bfloat16) * 0.05)(640) * 16.0)}

def reference(A_u, A_A_re, A_A_im, A_B_re, A_B_im, A_C_re, A_C_im, A_log_dt, A_Dskip, B_x, B_w_in, B_w_sp, B_b_sp, B_w_out, gate_w):

    def _A_ref(u, A_re, A_im, B_re, B_im, C_re, C_im, log_dt, Dskip):
        Bsz, L, D = u.shape
        dt = torch.exp(log_dt)[:, None]
        A = A_re + 1j * A_im
        Bc = B_re + 1j * B_im
        Cc = C_re + 1j * C_im
        logdA = dt * A
        dB = dt * Bc
        l = (lambda x, dt: x.to(dt))(torch.arange(L), A_re.dtype)
        P = torch.exp(logdA[:, :, None] * l[None, None, :])
        K = torch.einsum('dn,dnl,dn->dl', Cc, P, dB).real
        L2 = 2 * L
        Kp = _pad(K, ((0, 0), (0, L)))
        up = (lambda x, *d: x.permute(*d))(u, 0, 2, 1)
        up = _pad(up, ((0, 0), (0, 0), (0, L)))
        Kf = (lambda x, axes=(-2, -1): torch.fft.rfft2(x.float(), dim=axes))(Kp[:, None, :], axes=(-2, -1))
        Uf = (lambda x, axes=(-2, -1): torch.fft.rfft2(x.float(), dim=axes))(up[:, :, None, :], axes=(-2, -1))
        Yf = Uf * Kf[None, :, :, :]
        y = (lambda x, s, axes=(-2, -1): torch.fft.irfft2(x, s=s, dim=axes).to(torch.bfloat16))(Yf, (1, L2), axes=(-2, -1))[:, :, 0, :L]
        y = (lambda x, *d: x.permute(*d))(y, 0, 2, 1) + u * Dskip[None, None, :]
        return y

    def _B_ref(x, w_in, w_sp, b_sp, w_out):
        B, S, D = x.shape
        F = w_in.shape[-1]
        Fh = F // 2
        z = _gelu(torch.einsum('bsd,df->bsf', x, w_in))
        z1 = z[..., :Fh].clone()
        z2 = _layernorm(z[..., Fh:], axis=-1)
        g = torch.einsum('ts,bsf->btf', w_sp, z2) + b_sp[None, :, None]
        return torch.einsum('bsf,fd->bsd', z1 * g, w_out)
    x = A_u
    g = _sigmoid((x * gate_w).sum(-1, keepdims=True))
    a = _A_ref(x, A_A_re, A_A_im, A_B_re, A_B_im, A_C_re, A_C_im, A_log_dt, A_Dskip)
    b = _B_ref(x, B_w_in, B_w_sp, B_b_sp, B_w_out)
    return g * a + (1 - g) * b
```

```python
class KB:
    def __init__(self, name):
        self.name = name
        self.L = []
        self.lab = 0
    def __call__(self, s):
        for line in s.split('\n'):
            line = line.strip()
            if line: self.L.append('    ' + line)
    def label(self, s):
        self.L.append(s + ':')
    def newlabel(self, base='L'):
        self.lab += 1
        return f'{self.name}_{base}{self.lab}'
    def comment(self, s):
        self.L.append('    ; ' + s)
    def text(self):
        return '\n'.join(self.L)
    stamps = False
    def stamp(self, i):
        if self.stamps:
            self(f's_memrealtime s[{80+2*i}:{81+2*i}]')
    def stamp_flush(self, n, ws_lo, off=0x2000000):
        if self.stamps:
            self('s_waitcnt lgkmcnt(0) vmcnt(0)')
            self(f's_memrealtime s[{80+2*n}:{81+2*n}]')
            self('s_waitcnt lgkmcnt(0)')
            self(f's_lshl_b32 s70, s2, 6')
            self(f's_add_u32 s70, s70, {hex(off)}')
            self(f's_add_u32 s72, s{ws_lo}, s70')
            self(f's_addc_u32 s73, s{ws_lo+1}, 0')
            self('v_mov_b32 v250, 0')
            for i in range(n+1):
                self(f'v_mov_b32 v251, s{80+2*i}')
                self(f'global_store_dword v250, v251, s[72:73] offset:{4*i}')
    def srd(self, d, base_lo, base_hi, nbytes, off=None):
        if off is None or off == 0:
            self(f's_mov_b32 s{d}, s{base_lo}')
            self(f's_mov_b32 s{d+1}, s{base_hi}')
        else:
            self(f's_add_u32 s{d}, s{base_lo}, {off if isinstance(off,str) else hex(off)}')
            self(f's_addc_u32 s{d+1}, s{base_hi}, 0')
        self(f's_mov_b32 s{d+2}, {hex(nbytes)}')
        self(f's_mov_b32 s{d+3}, 0x00020000')

def vr(a, n):
    return f'v[{a}:{a+n-1}]' if n > 1 else f'v{a}'
def sr(a, n):
    return f's[{a}:{a+n-1}]' if n > 1 else f's{a}'

def wrap(header_comment, launches, kernels):
    out = []
    for l in header_comment.split('\n'):
        out.append('; ' + l if l else ';')
    for (name, grid, block, lds) in launches:
        out.append(f'; @launch kernel={name} grid=({grid},1,1) block=({block},1,1) lds={lds}')
    out += ['.amdgcn_target "amdgcn-amd-amdhsa--gfx950"', '.text']
    for (name, text, nv, ns) in kernels:
        out += [f'.globl {name}', '.p2align 8', f'.type {name},@function', f'{name}:', text]
    out += ['.section .rodata,"a"']
    for (name, text, nv, ns) in kernels:
        acc = (nv + 3) // 4 * 4
        out += ['.p2align 6', f'.amdhsa_kernel {name}', f'  .amdhsa_next_free_vgpr {nv}', f'  .amdhsa_next_free_sgpr {ns}',
                f'  .amdhsa_accum_offset {acc}', '  .amdhsa_group_segment_fixed_size 0', '  .amdhsa_kernarg_size 144',
                '  .amdhsa_user_sgpr_count 2', '  .amdhsa_user_sgpr_kernarg_segment_ptr 1',
                '  .amdhsa_system_sgpr_workgroup_id_x 1', '.end_amdhsa_kernel']
    return '\n'.join(out) + '\n'
```

```python
from asmlib import *
from layout import *
from gemm3 import rnd_unpack, unpack4
import struct
def f2u(x): return struct.unpack('<I', struct.pack('<f', x))[0]

class VM:
    def __init__(self, k): self.k = k; self.ops = []
    def issue(self, tag, ins): self.k(ins); self.ops.append(tag)
    def count_after(self, tags):
        idx = max(i for i, t in enumerate(self.ops) if t in tags)
        return len(self.ops) - 1 - idx
    def wait(self, tags, extra=''):
        n = self.count_after(tags)
        assert n <= 63
        self.k(f's_waitcnt vmcnt({n}){extra}')

LOG2E = 1.4426950408889634
GC1 = -2*0.7978845608028654*LOG2E
GC2 = GC1*0.044715

def gelu_pk(k, a, n, t, sC):
    for p in range(0, n, 2):
        k(f'v_pk_mul_f32 v[{t+p}:{t+p+1}], v[{a+p}:{a+p+1}], v[{a+p}:{a+p+1}]')
    for p in range(0, n, 2):
        k(f'v_pk_fma_f32 v[{t+p}:{t+p+1}], v[{t+p}:{t+p+1}], s[{sC+2}:{sC+3}], v[{sC_v}:{sC_v+1}]')
    for p in range(0, n, 2):
        k(f'v_pk_mul_f32 v[{t+p}:{t+p+1}], v[{t+p}:{t+p+1}], v[{a+p}:{a+p+1}]')
    for p in range(n):
        k(f'v_exp_f32 v{t+p}, v{t+p}')
    for p in range(0, n, 2):
        k(f'v_pk_add_f32 v[{t+p}:{t+p+1}], v[{t+p}:{t+p+1}], 1.0 op_sel_hi:[1,0]')
    for p in range(n):
        k(f'v_rcp_f32 v{t+p}, v{t+p}')
    for p in range(0, n, 2):
        k(f'v_pk_mul_f32 v[{a+p}:{a+p+1}], v[{a+p}:{a+p+1}], v[{t+p}:{t+p+1}]')

def allreduce16(k, regs, op='v_add_f32'):
    for sh in (8, 4, 2, 1):
        if len(regs) < 3: k('s_nop 1')
        for r in regs:
            k(f'{op}_dpp v{r}, v{r}, v{r} row_ror:{sh} row_mask:0xf bank_mask:0xf')

def gemm1_role(k):
    global sC_v
    WB = 81920; WS_ = 24576
    XCH = 49152
    k.stamp(0)
    k(f's_load_dwordx2 s[4:5], s[0:1], {KA["u"]}')
    k(f's_load_dwordx2 s[6:7], s[0:1], {KA["w_in"]}')
    k(f's_load_dwordx2 s[8:9], s[0:1], {KA["gate_w"]}')
    k(f's_load_dwordx4 s[12:15], s[0:1], {KA["dbg"]}')
    sWSp = 14
    sX, sW2, sW1, sZ1, sZ2, sST, sUT, sGW, sGT, sDB = 16, 20, 24, 28, 32, 36, 40, 44, 48, 52
    sRB, sCB, sWV, sT0, sT1, sT2, sMX, sMW, sKGP = 56, 57, 58, 59, 60, 61, 62, 63, 64
    sC = 66
    sM1, sM2, sM3, sEX = 72, 74, 76, 78
    k(f's_and_b32 s{sT0}, s2, 7')
    k(f's_lshr_b32 s{sT1}, s2, 3')
    k(f's_lshl_b32 s{sRB}, s{sT0}, 2')
    k(f's_and_b32 s{sT0}, s{sT1}, 3')
    k(f's_add_u32 s{sRB}, s{sRB}, s{sT0}')
    k(f's_lshr_b32 s{sCB}, s{sT1}, 2')
    vL, vT, vT2, vT3, vT4, vR, vKG = 1, 2, 3, 4, 5, 6, 7
    vDX = 8
    vDWr = 9
    vXA = 12
    vWA = 14
    vXW, vXR = 17, 18
    vZ2O, vZ1O, vSTW, vSTR = 19, 20, 21, 22
    vC1 = 24
    sC_v = vC1
    ACC2 = 28
    ACC1 = 52
    WF = 76
    XF = 124
    TMP = 204
    NV = 248
    k(f'v_lshrrev_b32 v{vT}, 6, v0')
    k(f'v_and_b32 v{vL}, 63, v0')
    k(f'v_readfirstlane_b32 s{sWV}, v{vT}')
    k(f'v_lshrrev_b32 v{vT}, 3, v{vL}')
    k(f'v_and_b32 v{vT2}, 7, v{vL}')
    k(f'v_lshrrev_b32 v{vT3}, 1, v{vT}')
    k(f'v_xor_b32 v{vT3}, v{vT2}, v{vT3}')
    k(f's_and_b32 s{sT0}, s{sWV}, 1')
    k(f's_lshl_b32 s{sT0}, s{sT0}, 2')
    k(f'v_xor_b32 v{vT3}, s{sT0}, v{vT3}')
    k(f'v_lshlrev_b32 v{vT3}, 4, v{vT3}')
    k(f's_lshl_b32 s{sT0}, s{sWV}, 3')
    k(f'v_add_u32 v{vT4}, s{sT0}, v{vT}')
    k(f'v_mul_u32_u24 v{vT4}, 1280, v{vT4}')
    k(f'v_add_u32 v{vDX}, v{vT4}, v{vT3}')
    k(f's_lshl_b32 s{sT0}, s{sWV}, 4')
    for q in range(3):
        k(f'v_add_u32 v{vT}, {64*q}, v{vL}')
        k(f'v_mul_u32_u24 v{vT2}, 0x5556, v{vT}')
        k(f'v_lshrrev_b32 v{vT2}, 18, v{vT2}')
        k(f'v_mul_u32_u24 v{vT3}, 12, v{vT2}')
        k(f'v_sub_u32 v{vT3}, v{vT}, v{vT3}')
        k(f'v_lshrrev_b32 v{vT4}, 2, v{vT2}')
        k(f'v_and_b32 v{vT4}, 2, v{vT4}')
        k(f'v_xor_b32 v{vT3}, v{vT3}, v{vT4}')
        k(f'v_add_u32 v{vT2}, s{sT0}, v{vT2}')
        k(f'v_mul_u32_u24 v{vT2}, 3072, v{vT2}')
        k(f'v_lshl_add_u32 v{vDWr+q}, v{vT3}, 4, v{vT2}')
    k(f's_lshl_b32 s{sMX}, s{sWV}, 10')
    k(f's_mul_i32 s{sMW}, s{sWV}, 3072')
    k(f's_lshr_b32 s{sKGP}, s{sWV}, 2')
    k('s_waitcnt lgkmcnt(0)')
    k(f's_mul_i32 s{sT0}, s{sRB}, {64*1280}')
    k.srd(sX, 4, 5, 64*1280, f's{sT0}')
    k(f's_mul_i32 s{sT0}, s{sCB}, 192')
    k.srd(sW1, 6, 7, 639*3072+192, f's{sT0}')
    k(f's_add_u32 s{sT0}, s{sT0}, 1536')
    k.srd(sW2, 6, 7, 639*3072+192, f's{sT0}')
    vm = VM(k)
    def dmaX(kb):
        k(f's_add_u32 m0, s{sMX}, {kb*8192}')
        k(f's_movk_i32 s{sT0}, {kb*128}')
        vm.issue(f'X{kb}', f'buffer_load_dwordx4 v{vDX}, s[{sX}:{sX+3}], s{sT0} offen lds')
    def wbase(st):
        if st < 8: return WB + (st % 3)*WS_
        return (st - 8)*WS_
    def dmaW(st, q):
        srd = sW2 if st < 5 else sW1
        k(f's_add_u32 m0, s{sMW}, {wbase(st) + q*1024}')
        k(f's_mov_b32 s{sT0}, {(st % 5)*128*3072}')
        vm.issue(f'W{st}', f'buffer_load_dwordx4 v{vDWr+q}, s[{srd}:{srd+3}], s{sT0} offen lds')
    for st in range(3):
        dmaX(2*st); dmaX(2*st+1)
        for q in range(3): dmaW(st, q)
    for kb in range(6, 10): dmaX(kb)
    GX = TMP + 24
    k.srd(sGW, 8, 9, 1280)
    k(f's_lshl_b32 s{sT0}, s{sCB}, 3')
    k(f's_add_u32 s{sT0}, s{sT0}, s{sWV}')
    k(f's_mul_i32 s{sT1}, s{sT0}, 1280')
    k(f'v_lshlrev_b32 v{vT}, 4, v{vL}')
    for r in range(4):
        k(f'v_mov_b32 v{GX+4+r}, 0')
        k(f'v_mov_b32 v{GX+12+r}, 0')
    vm.issue('G', f'buffer_load_dwordx4 v[{GX}:{GX+3}], v{vT}, s[{sX}:{sX+3}], s{sT1} offen')
    vm.issue('G', f'buffer_load_dwordx4 v[{GX+8}:{GX+11}], v{vT}, s[{sGW}:{sGW+3}], 0 offen')
    k('s_mov_b64 exec, 0xffff')
    vm.issue('G', f'buffer_load_dwordx4 v[{GX+4}:{GX+7}], v{vT}, s[{sX}:{sX+3}], s{sT1} offen offset:1024')
    vm.issue('G', f'buffer_load_dwordx4 v[{GX+12}:{GX+15}], v{vT}, s[{sGW}:{sGW+3}], 0 offen offset:1024')
    k('s_mov_b64 exec, -1')
    k(f'v_and_b32 v{vR}, 15, v{vL}')
    k(f'v_lshrrev_b32 v{vKG}, 4, v{vL}')
    k(f'v_lshrrev_b32 v{vT}, 1, v{vR}')
    k(f'v_xor_b32 v{vT}, v{vT}, v{vKG}')
    k(f's_lshl_b32 s{sT0}, s{sKGP}, 2')
    k(f'v_xor_b32 v{vT}, s{sT0}, v{vT}')
    k(f'v_lshlrev_b32 v{vT}, 4, v{vT}')
    k(f'v_lshl_add_u32 v{vT}, v{vR}, 7, v{vT}')
    k(f's_and_b32 s{sT0}, s{sWV}, 1')
    k(f's_lshl_b32 s{sT0}, s{sT0}, 12')
    k(f'v_add_u32 v{vXA}, s{sT0}, v{vT}')
    k(f'v_add_u32 v{vXA+1}, 40960, v{vXA}')
    k(f'v_lshrrev_b32 v{vT}, 2, v{vR}')
    k(f'v_lshl_add_u32 v{vT}, v{vKG}, 3, v{vT}')
    k(f's_lshl_b32 s{sT0}, s{sKGP}, 5')
    k(f'v_add_u32 v{vT}, s{sT0}, v{vT}')
    k(f'v_mul_u32_u24 v{vT}, 192, v{vT}')
    k(f'v_and_b32 v{vT2}, 3, v{vL}')
    k(f'v_lshl_add_u32 v{vT}, v{vT2}, 3, v{vT}')
    k(f'v_and_b32 v{vT2}, 1, v{vKG}')
    k(f'v_lshlrev_b32 v{vT2}, 1, v{vT2}')
    k(f's_lshr_b32 s{sT1}, s{sWV}, 1')
    k(f's_and_b32 s{sT1}, s{sT1}, 1')
    k(f's_mul_i32 s{sT0}, s{sT1}, 6')
    for j in range(3):
        k(f's_add_u32 s{sT2}, s{sT0}, {2*j}')
        k(f'v_xor_b32 v{vT3}, s{sT2}, v{vT2}')
        k(f'v_lshl_add_u32 v{vWA+j}, v{vT3}, 4, v{vT}')
    k(f'v_lshlrev_b32 v{vT}, 4, v{vL}')
    k(f's_add_u32 s{sT0}, s{sMW}, {XCH}')
    k(f'v_add_u32 v{vXW}, s{sT0}, v{vT}')
    k(f's_xor_b32 s{sT0}, s{sWV}, 4')
    k(f's_mul_i32 s{sT0}, s{sT0}, 3072')
    k(f's_add_u32 s{sT0}, s{sT0}, {XCH}')
    k(f'v_add_u32 v{vXR}, s{sT0}, v{vT}')
    k(f's_and_b32 s{sT0}, s{sWV}, 1')
    k(f's_lshl_b32 s{sT0}, s{sT0}, 5')
    k(f's_lshl_b32 s{sT2}, s{sKGP}, 4')
    k(f's_add_u32 s{sT0}, s{sT0}, s{sT2}')
    k(f's_mul_i32 s{sT1}, s{sT1}, 48')
    k(f'v_add_u32 v{vT}, s{sT1}, v{vR}')
    k(f'v_lshlrev_b32 v{vT}, 12, v{vT}')
    k(f'v_lshl_add_u32 v{vT}, v{vKG}, 3, v{vT}')
    k(f's_lshl_b32 s{sT2}, s{sT0}, 1')
    k(f'v_add_u32 v{vZ2O}, s{sT2}, v{vT}')
    k(f'v_add_u32 v{vT}, s{sT0}, v{vR}')
    k(f'v_mul_u32_u24 v{vT}, 1536, v{vT}')
    k(f'v_lshl_add_u32 v{vT}, v{vKG}, 3, v{vT}')
    k(f's_lshl_b32 s{sT2}, s{sT1}, 1')
    k(f'v_add_u32 v{vZ1O}, s{sT2}, v{vT}')
    k(f'v_lshl_add_u32 v{vT}, v{vKG}, 2, v{vR}')
    k(f'v_add_u32 v{vT}, s{sT0}, v{vT}')
    k(f'v_lshlrev_b32 v{vT}, 3, v{vT}')
    k(f's_lshr_b32 s{sT1}, s{sWV}, 1')
    k(f's_and_b32 s{sT1}, s{sT1}, 1')
    k(f's_lshl_b32 s{sT2}, s{sCB}, 1')
    k(f's_add_u32 s{sT1}, s{sT1}, s{sT2}')
    k(f's_lshl_b32 s{sT1}, s{sT1}, 9')
    k(f'v_add_u32 v{vSTW}, s{sT1}, v{vT}')
    k(f'v_lshlrev_b32 v{vT}, 9, v{vR}')
    k(f'v_lshl_add_u32 v{vT}, v{vKG}, 5, v{vT}')
    k(f's_lshl_b32 s{sT2}, s{sT0}, 3')
    k(f'v_add_u32 v{vSTR}, s{sT2}, v{vT}')
    k(f'v_cmp_eq_u32 s[{sM1}:{sM1+1}], 1, v{vR}')
    k(f'v_cmp_eq_u32 s[{sM2}:{sM2+1}], 2, v{vR}')
    k(f'v_cmp_eq_u32 s[{sM3}:{sM3+1}], 3, v{vR}')
    k(f'v_cmp_gt_u32 s[{sEX}:{sEX+1}], 4, v{vR}')
    k(f'v_mov_b32 v{vC1}, {hex(f2u(GC1))}')
    k(f'v_mov_b32 v{vC1+1}, {hex(f2u(GC1))}')
    k(f's_mov_b32 s{sC+2}, {hex(f2u(GC2))}')
    k(f's_mov_b32 s{sC+3}, {hex(f2u(GC2))}')
    k(f's_mul_i32 s{sT0}, s{sRB}, {64*1536}')
    k(f's_mul_i32 s{sT1}, s{sCB}, 192')
    k(f's_add_u32 s{sT0}, s{sT0}, s{sT1}')
    k(f's_add_u32 s{sT0}, s{sT0}, {WS_Z1}')
    k.srd(sZ1, sWSp, sWSp+1, 63*1536+192, f's{sT0}')
    k(f's_mul_i32 s{sT0}, s{sCB}, {96*4096}')
    k(f's_lshl_b32 s{sT1}, s{sRB}, 7')
    k(f's_add_u32 s{sT0}, s{sT0}, s{sT1}')
    k(f's_add_u32 s{sT0}, s{sT0}, {WS_Z2T}')
    k.srd(sZ2, sWSp, sWSp+1, 95*4096+128, f's{sT0}')
    k(f's_lshl_b32 s{sT0}, s{sRB}, 13')
    k(f's_add_u32 s{sT0}, s{sT0}, {WS_ST}')
    k.srd(sST, sWSp, sWSp+1, 8192, f's{sT0}')
    k.srd(sUT, sWSp, sWSp+1, 640*UT_PITCH*2, WS_UT)
    k.srd(sGT, sWSp, sWSp+1, 2048*8, WS_G)
    k.srd(sDB, 12, 13, 256)
    for r in range(48):
        k(f'v_mov_b32 v{ACC2+r}, 0')
    def wreads(st, fs):
        out = []
        base = wbase(st)
        for kk2 in range(2):
            for j in range(3):
                for h in range(2):
                    r = WF + fs*24 + kk2*12 + j*4 + 2*h
                    out.append((r, j, base + kk2*12288 + h*768))
        return out
    vWB = 244
    for j in range(3):
        k(f'v_add_u32 v{vWB+j}, {WB}, v{vWA+j}')
    def wread_ins(st, fs):
        o = []
        for (r, j, off) in wreads(st, fs):
            if off >= WB: o.append(f'ds_read_b64_tr_b16 v[{r}:{r+1}], v{vWB+j} offset:{off-WB}')
            else: o.append(f'ds_read_b64_tr_b16 v[{r}:{r+1}], v{vWA+j} offset:{off}')
        return o
    def xread_ins(st):
        o = []
        for kk2 in range(2):
            kb = 2*st + kk2
            for i in range(2):
                r = XF + kb*8 + i*4
                if kb >= 5: o.append(f'ds_read_b128 v[{r}:{r+3}], v{vXA+1} offset:{(kb-5)*8192 + i*2048}')
                else: o.append(f'ds_read_b128 v[{r}:{r+3}], v{vXA} offset:{kb*8192 + i*2048}')
        return o
    def mf(st, fs):
        o = []
        for kk2 in range(2):
            kb = 2*(st % 5) + kk2
            for j in range(3):
                for i in range(2):
                    w = WF + fs*24 + kk2*12 + j*4
                    x = XF + kb*8 + i*4
                    if st < 5:
                        a = ACC2 + (i*3+j)*4
                        o.append(f'v_mfma_f32_16x16x32_bf16 v[{a}:{a+3}], v[{x}:{x+3}], v[{w}:{w+3}], v[{a}:{a+3}]')
                    else:
                        a = ACC1 + (i*3+j)*4
                        o.append(f'v_mfma_f32_16x16x32_bf16 v[{a}:{a+3}], v[{w}:{w+3}], v[{x}:{x+3}], v[{a}:{a+3}]')
        return o
    def interleave(mfs, rd, per=3, dm=None, dm_at=()):
        rd = list(rd); dm = list(dm or [])
        for n, m in enumerate(mfs):
            k(m)
            for _ in range(per):
                if rd: k(rd.pop(0))
            if dm and n in dm_at:
                dm.pop(0)()
        assert not rd and not dm
    def mix(a, b):
        return b[:2] + a[:6] + b[2:] + a[6:]
    vm.wait({'W0', 'X0', 'X1'})
    k('s_barrier')
    k.stamp(1)
    for r in mix(wread_ins(0, 0), xread_ins(0)): k(r)
    for st in range(5):
        nx = st + 1
        need = {f'W{nx}'} | ({f'X{2*nx}', f'X{2*nx+1}'} if nx < 5 else set())
        vm.wait(need, ' lgkmcnt(0)')
        k('s_barrier')
        rd = mix(wread_ins(nx, nx % 2), xread_ins(nx)) if nx < 5 else wread_ins(nx, nx % 2)
        dm = [lambda q=q, s=st: dmaW(s+3, q) for q in range(3)]
        at = (6, 7, 8)
        if st == 4:
            dm += [lambda q=q, s=s: dmaW(s, q) for s in (8, 9) for q in range(3)]
            at = (3, 4, 5, 6, 7, 8, 9, 10, 11)
        interleave(mf(st, st % 2), rd, 3, dm, at)
        if st == 3:
            side_jobs(k, vm, locals())
    k.stamp(2)
    k('s_nop 7')
    lab_hi = k.newlabel('x1hi'); lab_j = k.newlabel('x1j')
    def exch_write(ACC):
        lab_hi = k.newlabel('xhi'); lab_j = k.newlabel('xj')
        k(f's_cmp_lg_u32 s{sKGP}, 0')
        k(f's_cbranch_scc1 {lab_hi}')
        for j in range(3):
            k(f'ds_write_b128 v{vXW}, v[{ACC+12+4*j}:{ACC+15+4*j}] offset:{j*1024}')
        k(f's_branch {lab_j}')
        k.label(lab_hi)
        for j in range(3):
            k(f'ds_write_b128 v{vXW}, v[{ACC+4*j}:{ACC+3+4*j}] offset:{j*1024}')
        k('s_nop 1')
        for r in range(0, 12, 2):
            k(f'v_pk_add_f32 v[{ACC+r}:{ACC+r+1}], v[{ACC+12+r}:{ACC+13+r}], 0 op_sel_hi:[1,0]')
        k.label(lab_j)
    exch_write(ACC2)
    vm.wait({'W6'}, ' lgkmcnt(0)')
    k('s_barrier')
    for j in range(3):
        k(f'ds_read_b128 v[{TMP+4*j}:{TMP+3+4*j}], v{vXR} offset:{j*1024}')
    rd = wread_ins(6, 0)
    interleave(mf(5, 1), rd, 3)
    k('s_waitcnt lgkmcnt(12)')
    Z = ACC2
    for r in range(0, 12, 2):
        k(f'v_pk_add_f32 v[{Z+r}:{Z+r+1}], v[{Z+r}:{Z+r+1}], v[{TMP+r}:{TMP+r+1}]')
    for j in range(3): rnd_unpack(k, Z+4*j, TMP+2*j)
    gelu_pk(k, Z, 12, TMP, sC)
    for j in range(3): rnd_unpack(k, Z+4*j, TMP+2*j)
    S = TMP; Dv = TMP + 4; Q = TMP + 16
    for r in (0, 2):
        k(f'v_pk_add_f32 v[{S+r}:{S+r+1}], v[{Z+r}:{Z+r+1}], v[{Z+4+r}:{Z+5+r}]')
    for r in (0, 2):
        k(f'v_pk_add_f32 v[{S+r}:{S+r+1}], v[{S+r}:{S+r+1}], v[{Z+8+r}:{Z+9+r}]')
    k('s_nop 0')
    allreduce16(k, [S, S+1, S+2, S+3])
    k(f's_mov_b32 s{sT0}, {hex(f2u(1.0/48))}')
    for r in range(4):
        k(f'v_mul_f32 v{S+r}, s{sT0}, v{S+r}')
    for j in range(3):
        for r in (0, 2):
            k(f'v_pk_add_f32 v[{Dv+4*j+r}:{Dv+4*j+r+1}], v[{Z+4*j+r}:{Z+4*j+r+1}], v[{S+r}:{S+r+1}] neg_lo:[0,1] neg_hi:[0,1]')
    for r in (0, 2):
        k(f'v_pk_mul_f32 v[{Q+r}:{Q+r+1}], v[{Dv+r}:{Dv+r+1}], v[{Dv+r}:{Dv+r+1}]')
    for j in (1, 2):
        for r in (0, 2):
            k(f'v_pk_fma_f32 v[{Q+r}:{Q+r+1}], v[{Dv+4*j+r}:{Dv+4*j+r+1}], v[{Dv+4*j+r}:{Dv+4*j+r+1}], v[{Q+r}:{Q+r+1}]')
    k('s_nop 0')
    allreduce16(k, [Q, Q+1, Q+2, Q+3])
    P = TMP + 20
    k(f'v_cndmask_b32 v{P}, v{S}, v{S+1}, s[{sM1}:{sM1+1}]')
    k(f'v_cndmask_b32 v{P+1}, v{Q}, v{Q+1}, s[{sM1}:{sM1+1}]')
    k(f'v_cndmask_b32 v{P}, v{P}, v{S+2}, s[{sM2}:{sM2+1}]')
    k(f'v_cndmask_b32 v{P+1}, v{P+1}, v{Q+2}, s[{sM2}:{sM2+1}]')
    k(f'v_cndmask_b32 v{P}, v{P}, v{S+3}, s[{sM3}:{sM3+1}]')
    k(f'v_cndmask_b32 v{P+1}, v{P+1}, v{Q+3}, s[{sM3}:{sM3+1}]')
    k(f's_mov_b64 exec, s[{sEX}:{sEX+1}]')
    vm.issue('ST', f'buffer_store_dwordx2 v[{P}:{P+1}], v{vSTW}, s[{sST}:{sST+3}], 0 offen sc1')
    k('s_mov_b64 exec, -1')
    k.stamp(3)
    vm.wait({'W7'}, ' lgkmcnt(0)')
    k('s_barrier')
    interleave(mf(6, 0), wread_ins(7, 1), 3)
    vm.wait({'W9', 'ST'}, ' lgkmcnt(0)')
    k('s_barrier')
    k(f'v_mov_b32 v{TMP+24}, 1')
    k(f's_lshl_b32 s{sT0}, s{sRB}, 3')
    k(f'v_mov_b32 v{TMP+25}, s{sT0}')
    k(f's_add_u32 s{sT0}, s{sT0}, s{sCB}')
    k(f'v_mov_b32 v{TMP+26}, s{sT0}')
    lsig = k.newlabel('sig')
    k(f's_cmp_lg_u32 s{sWV}, 0')
    k(f's_cbranch_scc1 {lsig}')
    k('s_mov_b64 exec, 1')
    k(f'buffer_store_byte v{TMP+24}, v{TMP+26}, s[{sDB}:{sDB+3}], 0 offen sc1')
    k('s_mov_b64 exec, -1')
    k.label(lsig)
    interleave(mf(7, 1), wread_ins(8, 0), 3)
    k('s_waitcnt lgkmcnt(0)')
    interleave(mf(8, 0), wread_ins(9, 1), 3)
    k('s_waitcnt lgkmcnt(0)')
    interleave(mf(9, 1), [], 3)
    k.stamp(4)
    k('s_nop 7')
    exch_write(ACC1)
    k('s_waitcnt lgkmcnt(0)')
    k('s_barrier')
    for j in range(3):
        k(f'ds_read_b128 v[{TMP+4*j}:{TMP+3+4*j}], v{vXR} offset:{j*1024}')
    k('s_waitcnt lgkmcnt(0)')
    Y = ACC1
    for r in range(0, 12, 2):
        k(f'v_pk_add_f32 v[{Y+r}:{Y+r+1}], v[{Y+r}:{Y+r+1}], v[{TMP+r}:{TMP+r+1}]')
    for j in range(3): rnd_unpack(k, Y+4*j, TMP+2*j)
    gelu_pk(k, Y, 12, TMP, sC)
    for j in range(3):
        k(f'v_cvt_pk_bf16_f32 v{TMP+2*j}, v{Y+4*j}, v{Y+4*j+1}')
        k(f'v_cvt_pk_bf16_f32 v{TMP+2*j+1}, v{Y+4*j+2}, v{Y+4*j+3}')
        vm.issue('Z1', f'buffer_store_dwordx2 v[{TMP+2*j}:{TMP+2*j+1}], v{vZ1O}, s[{sZ1}:{sZ1+3}], 0 offen offset:{32*j}')
    k.stamp(5)
    lp = k.newlabel('poll'); lpd = k.newlabel('polld')
    k(f's_cmp_lg_u32 s{sWV}, 0')
    k(f's_cbranch_scc1 {lpd}')
    k.label(lp)
    k(f'buffer_load_dwordx2 v[{TMP+26}:{TMP+27}], v{TMP+25}, s[{sDB}:{sDB+3}], 0 offen sc1')
    k('s_waitcnt vmcnt(0)')
    k(f'v_and_b32 v{TMP+26}, v{TMP+26}, v{TMP+27}')
    k('s_nop 0')
    k(f'v_readfirstlane_b32 s{sT0}, v{TMP+26}')
    k(f's_cmp_eq_u32 s{sT0}, 0x01010101')
    k(f's_cbranch_scc1 {lpd}')
    k('s_sleep 1')
    k(f's_branch {lp}')
    k.label(lpd)
    k('s_barrier')
    k.stamp(6)
    A = TMP + 8
    k(f'buffer_load_dwordx4 v[{A}:{A+3}], v{vSTR}, s[{sST}:{sST+3}], 0 offen sc1')
    k(f'buffer_load_dwordx4 v[{A+4}:{A+7}], v{vSTR}, s[{sST}:{sST+3}], 0 offen offset:16 sc1')
    k('s_waitcnt vmcnt(0)')
    Mn = TMP + 16; Vr = TMP + 20
    for r in range(4): k(f'v_mov_b32 v{Mn+r}, v{A+2*r}')
    k('s_nop 0')
    allreduce16(k, [Mn, Mn+1, Mn+2, Mn+3])
    k(f's_mov_b32 s{sT0}, {hex(f2u(48.0))}')
    for r in range(4):
        k(f'v_mul_f32 v{Mn+r}, 0x3d800000, v{Mn+r}')
    for r in range(4):
        k(f'v_sub_f32 v{A+2*r}, v{A+2*r}, v{Mn+r}')
    for r in range(4):
        k(f'v_mul_f32 v{A+2*r}, v{A+2*r}, v{A+2*r}')
    for r in range(4):
        k(f'v_fma_f32 v{Vr+r}, v{A+2*r}, s{sT0}, v{A+2*r+1}')
    k('s_nop 0')
    allreduce16(k, [Vr, Vr+1, Vr+2, Vr+3])
    k(f's_mov_b32 s{sT0}, {hex(f2u(1.0/768))}')
    for r in range(4):
        k(f'v_mul_f32 v{Vr+r}, s{sT0}, v{Vr+r}')
    rnd_unpack(k, Mn, TMP)
    rnd_unpack(k, Vr, TMP+2)
    for r in range(4):
        k(f'v_add_f32 v{Vr+r}, {hex(f2u(1e-5))}, v{Vr+r}')
    rnd_unpack(k, Vr, TMP)
    for r in range(4):
        k(f'v_sqrt_f32 v{Vr+r}, v{Vr+r}')
    k('s_nop 0')
    rnd_unpack(k, Vr, TMP)
    for r in range(4):
        k(f'v_rcp_f32 v{Vr+r}, v{Vr+r}')
    for j in range(3):
        for r in (0, 2):
            k(f'v_pk_add_f32 v[{Z+4*j+r}:{Z+4*j+r+1}], v[{Z+4*j+r}:{Z+4*j+r+1}], v[{Mn+r}:{Mn+r+1}] neg_lo:[0,1] neg_hi:[0,1]')
    for j in range(3): rnd_unpack(k, Z+4*j, TMP+2*j)
    for j in range(3):
        for r in (0, 2):
            k(f'v_pk_mul_f32 v[{Z+4*j+r}:{Z+4*j+r+1}], v[{Z+4*j+r}:{Z+4*j+r+1}], v[{Vr+r}:{Vr+r+1}]')
    for j in range(3):
        k(f'v_cvt_pk_bf16_f32 v{TMP+2*j}, v{Z+4*j}, v{Z+4*j+1}')
        k(f'v_cvt_pk_bf16_f32 v{TMP+2*j+1}, v{Z+4*j+2}, v{Z+4*j+3}')
        k(f's_mov_b32 s{sT0}, {j*16*4096}')
        k(f'buffer_store_dwordx2 v[{TMP+2*j}:{TMP+2*j+1}], v{vZ2O}, s[{sZ2}:{sZ2+3}], s{sT0} offen')
    k.stamp(7)
    k.stamp_flush(8, sWSp)
    return WB + 3*WS_, NV

def side_jobs(k, vm, L):
    g = lambda n: L[n]
    sWV, sCB, sRB, sT0, sT1, sT2 = g('sWV'), g('sCB'), g('sRB'), g('sT0'), g('sT1'), g('sT2')
    vL, vR, vKG, TMP = g('vL'), g('vR'), g('vKG'), g('TMP')
    sUT, sGW, sGT, sX = g('sUT'), g('sGW'), g('sGT'), g('sX')
    lg = k.newlabel('gate'); le = k.newlabel('sjend')
    k(f's_cmp_ge_u32 s{sWV}, 5')
    k(f's_cbranch_scc1 {lg}')
    k(f's_mul_i32 s{sT0}, s{sCB}, 5')
    k(f's_add_u32 s{sT0}, s{sT0}, s{sWV}')
    a, b, c, d = TMP, TMP+1, TMP+2, TMP+3
    k(f'v_lshrrev_b32 v{a}, 2, v{vR}')
    k(f'v_lshl_add_u32 v{b}, v{vKG}, 3, v{a}')
    k(f'v_lshrrev_b32 v{c}, 1, v{b}')
    k(f'v_and_b32 v{c}, 7, v{c}')
    k(f'v_and_b32 v{d}, 3, v{vL}')
    k(f'v_lshrrev_b32 v{a}, 1, v{d}')
    k(f's_and_b32 s{sT1}, s{sT0}, 3')
    k(f's_lshl_b32 s{sT1}, s{sT1}, 1')
    k(f'v_or_b32 v{a}, s{sT1}, v{a}')
    k(f'v_xor_b32 v{a}, v{a}, v{c}')
    k(f'v_lshlrev_b32 v{a}, 4, v{a}')
    k(f'v_lshl_add_u32 v{a}, v{b}, 7, v{a}')
    k(f'v_and_b32 v{d}, 1, v{d}')
    k(f'v_lshl_add_u32 v{a}, v{d}, 3, v{a}')
    k(f's_lshr_b32 s{sT1}, s{sT0}, 2')
    k(f's_lshl_b32 s{sT1}, s{sT1}, 13')
    k(f'v_add_u32 v{a}, s{sT1}, v{a}')
    k(f'v_xor_b32 v{c}, 32, v{a}')
    R = TMP + 4
    for half in range(2):
        k(f'ds_read_b64_tr_b16 v[{R+4*half}:{R+4*half+1}], v{a} offset:{half*4096}')
        k(f'ds_read_b64_tr_b16 v[{R+4*half+2}:{R+4*half+3}], v{c} offset:{half*4096+512}')
    k(f's_lshl_b32 s{sT0}, s{sT0}, 4')
    k(f'v_add_u32 v{b}, s{sT0}, v{vR}')
    k(f'v_mul_u32_u24 v{b}, {UT_PITCH*2}, v{b}')
    k(f'v_lshl_add_u32 v{d}, v{vKG}, 4, v{b}')
    k(f's_lshl_b32 s{sT1}, s{sRB}, 7')
    k(f's_add_u32 s{sT1}, s{sT1}, {UT_PAD*2}')
    for r in range(4): k(f'v_mov_b32 v{R+8+r}, 0')
    k('s_waitcnt lgkmcnt(0)')
    k(f'buffer_store_dwordx4 v[{R}:{R+3}], v{d}, s[{sUT}:{sUT+3}], s{sT1} offen')
    k(f'buffer_store_dwordx4 v[{R+4}:{R+7}], v{d}, s[{sUT}:{sUT+3}], s{sT1} offen offset:64')
    k(f's_cmp_eq_u32 s{sRB}, 0')
    k(f's_cselect_b32 s{sT1}, 0, 0x7f000000')
    k(f'buffer_store_dwordx4 v[{R+8}:{R+11}], v{d}, s[{sUT}:{sUT+3}], s{sT1} offen')
    k.label(lg)
    GX = g('GX')
    vm.wait({'G'})
    ACCr = TMP + 3
    k(f'v_mov_b32 v{ACCr}, 0')
    for q in range(4):
        unpack4(k, TMP+12, GX+2*q)
        unpack4(k, TMP+16, GX+8+2*q)
        for r in (0, 2):
            k(f'v_pk_mul_f32 v[{TMP+12+r}:{TMP+13+r}], v[{TMP+12+r}:{TMP+13+r}], v[{TMP+16+r}:{TMP+17+r}]')
        rnd_unpack(k, TMP+12, TMP+20)
        k(f'v_pk_add_f32 v[{TMP+12}:{TMP+13}], v[{TMP+12}:{TMP+13}], v[{TMP+14}:{TMP+15}]')
        k(f'v_add_f32 v{ACCr}, v{TMP+12}, v{ACCr}')
        k(f'v_add_f32 v{ACCr}, v{TMP+13}, v{ACCr}')
    allreduce16(k, [ACCr])
    k('s_nop 1')
    k(f'v_add_f32_dpp v{ACCr}, v{ACCr}, v{ACCr} row_bcast:15 row_mask:0xa bank_mask:0xf')
    k('s_nop 1')
    k(f'v_add_f32_dpp v{ACCr}, v{ACCr}, v{ACCr} row_bcast:31 row_mask:0xc bank_mask:0xf')
    X = TMP + 4
    k(f'v_cvt_pk_bf16_f32 v{ACCr}, v{ACCr}, v{ACCr}')
    k(f'v_lshlrev_b32 v{ACCr}, 16, v{ACCr}')
    k(f'v_mul_f32 v{X}, {hex(f2u(-LOG2E))}, v{ACCr}')
    k(f'v_exp_f32 v{X}, v{X}')
    k('s_nop 0')
    k(f'v_add_f32 v{X}, 1.0, v{X}')
    k(f'v_rcp_f32 v{X}, v{X}')
    k('s_nop 0')
    k(f'v_cvt_pk_bf16_f32 v{X}, v{X}, v{X}')
    k(f'v_lshlrev_b32 v{X}, 16, v{X}')
    k(f'v_sub_f32 v{X+1}, 1.0, v{X}')
    k(f'v_cvt_pk_bf16_f32 v{X+1}, v{X+1}, v{X+1}')
    k(f'v_lshlrev_b32 v{X+1}, 16, v{X+1}')
    k(f's_lshl_b32 s{sT1}, s{sRB}, 6')
    k(f's_lshl_b32 s{sT0}, s{sCB}, 3')
    k(f's_add_u32 s{sT1}, s{sT1}, s{sT0}')
    k(f's_add_u32 s{sT1}, s{sT1}, s{sWV}')
    k(f's_lshl_b32 s{sT1}, s{sT1}, 3')
    k(f'v_mov_b32 v{TMP}, s{sT1}')
    k('s_mov_b32 exec_lo, 0')
    k('s_mov_b32 exec_hi, 0x80000000')
    vm.issue('GS', f'buffer_store_dwordx2 v[{X}:{X+1}], v{TMP}, s[{sGT}:{sGT+3}], 0 offen')
    k('s_mov_b64 exec, -1')
    k.label(le)

if __name__ == '__main__':
    import sys
    k = KB('k1')
    k.stamps = len(sys.argv) > 1
    k('s_cmp_ge_u32 s2, 256')
    k('s_cbranch_scc1 k1_end')
    lds, nv = gemm1_role(k)
    k.label('k1_end')
    k('s_endpgm')
    open('g1.s', 'w').write(wrap('gemm1 test', [('k1_kernel', 256, 512, lds)], [('k1_kernel', k.text(), 256 if k.stamps else nv, 100)]))
```

```python
from asmlib import *
from layout import *

def gemm2_role(k, NS=4, exit_label=None):
    STG = 20480
    sWSP, sBSP, sWS = 4, 6, 8
    sZ, sW, sZ1, sH, sB = 12, 16, 20, 24, 28
    sTT, sTF, sWV, sK, sMZ, sMW, sT0, sT1, sCNT = 32, 33, 34, 35, 36, 37, 38, 39, 40
    k.stamp(0)
    k(f's_load_dwordx4 s[{sWSP}:{sWSP+3}], s[0:1], {KA["w_sp"]}')
    k(f's_load_dwordx2 s[{sWS}:{sWS+1}], s[0:1], {KA["ws"]}')
    k(f's_and_b32 s{sT0}, s2, 7')
    k(f's_lshr_b32 s{sT1}, s2, 3')
    k(f's_lshr_b32 s{sTT}, s{sT0}, 1')
    k(f's_lshl_b32 s{sTT}, s{sTT}, 3')
    k(f's_and_b32 s{sTF}, s{sT1}, 7')
    k(f's_add_u32 s{sTT}, s{sTT}, s{sTF}')
    k(f's_and_b32 s{sTF}, s{sT0}, 1')
    k(f's_lshl_b32 s{sTF}, s{sTF}, 2')
    k(f's_lshr_b32 s{sT1}, s{sT1}, 3')
    k(f's_add_u32 s{sTF}, s{sTF}, s{sT1}')
    vL, vT, vT2, vT3 = 1, 2, 3, 4
    vDZ = 5
    vDW = 8
    vFA = 10
    vFB = 14
    vEO = 18
    vBS = 20
    vZ1 = 22
    ACC = 36
    FR = 60
    k(f'v_lshrrev_b32 v{vT}, 6, v0')
    k(f'v_and_b32 v{vL}, 63, v0')
    k(f'v_readfirstlane_b32 s{sWV}, v{vT}')
    k(f'v_lshrrev_b32 v{vT}, 3, v{vL}')
    k(f'v_and_b32 v{vT2}, 7, v{vL}')
    k(f'v_lshrrev_b32 v{vT3}, 1, v{vT}')
    k(f'v_xor_b32 v{vT2}, v{vT2}, v{vT3}')
    k(f'v_lshlrev_b32 v{vT2}, 4, v{vT2}')
    k(f'v_lshl_add_u32 v{vT2}, v{vT}, 12, v{vT2}')
    for q in range(3):
        k(f's_mul_i32 s{sT0}, s{sWV}, 3')
        k(f's_add_u32 s{sT0}, s{sT0}, {q}')
        k(f's_and_b32 s{sT1}, s{sT0}, 1')
        k(f's_lshl_b32 s{sT1}, s{sT1}, 6')
        k(f's_lshl_b32 s{sT0}, s{sT0}, 15')
        k(f'v_xor_b32 v{vDZ+q}, s{sT1}, v{vT2}')
        k(f'v_add_u32 v{vDZ+q}, s{sT0}, v{vDZ+q}')
    for q in range(2):
        k(f's_lshl_b32 s{sT0}, s{sWV}, 16')
        k(f's_add_u32 s{sT0}, s{sT0}, {q*32768}')
        k(f'v_xor_b32 v{vDW+q}, {64*q}, v{vT2}')
        k(f'v_add_u32 v{vDW+q}, s{sT0}, v{vDW+q}')
    k(f's_mul_i32 s{sMZ}, s{sWV}, 3072')
    k(f's_lshl_b32 s{sMW}, s{sWV}, 11')
    k(f's_add_u32 s{sMW}, s{sMW}, 12288')
    k(f'v_and_b32 v{vT}, 15, v{vL}')
    k(f'v_lshrrev_b32 v{vT2}, 4, v{vL}')
    k(f'v_lshrrev_b32 v{vT3}, 1, v{vT}')
    k(f'v_xor_b32 v{vT3}, v{vT3}, v{vT2}')
    k(f'v_lshlrev_b32 v{vT3}, 4, v{vT3}')
    k(f'v_lshl_add_u32 v{vT3}, v{vT}, 7, v{vT3}')
    k(f's_and_b32 s{sT0}, s{sWV}, 1')
    k(f's_mul_i32 s{sT0}, s{sT0}, {48*128}')
    k(f's_lshr_b32 s{sT1}, s{sWV}, 1')
    k(f's_lshl_b32 s{sT1}, s{sT1}, 12')
    k(f's_add_u32 s{sT1}, s{sT1}, {96*128}')
    k(f'v_add_u32 v{vFA}, s{sT0}, v{vT3}')
    k(f'v_add_u32 v{vFB}, s{sT1}, v{vT3}')
    k(f'v_xor_b32 v{vFA+1}, 64, v{vFA}')
    k(f'v_xor_b32 v{vFB+1}, 64, v{vFB}')
    for b in (vFA, vFB):
        k(f'v_add_u32 v{b+2}, {2*STG}, v{b}')
        k(f'v_add_u32 v{b+3}, {2*STG}, v{b+1}')
    k(f's_lshr_b32 s{sT1}, s{sWV}, 1')
    k(f's_lshl_b32 s{sT1}, s{sT1}, 5')
    k(f'v_add_u32 v{vEO}, s{sT1}, v{vT}')
    k(f'v_lshlrev_b32 v{vEO+1}, 1, v{vEO}')
    k(f'v_mul_u32_u24 v{vEO}, 1536, v{vEO}')
    k(f's_and_b32 s{sT0}, s{sWV}, 1')
    k(f's_mul_i32 s{sT0}, s{sT0}, 96')
    k(f'v_lshl_add_u32 v{vEO}, v{vT2}, 3, v{vEO}')
    k(f'v_add_u32 v{vEO}, s{sT0}, v{vEO}')
    k('s_waitcnt lgkmcnt(0)')
    k(f's_mul_i32 s{sT0}, s{sTF}, {96*4096}')
    k(f's_add_u32 s{sT0}, s{sT0}, {WS_Z2T}')
    k.srd(sZ, sWS, sWS+1, 96*4096, f's{sT0}')
    k(f's_lshl_b32 s{sT0}, s{sTT}, 18')
    k.srd(sW, sWSP, sWSP+1, 64*4096, f's{sT0}')
    k(f's_mul_i32 s{sT0}, s{sTT}, {64*1536}')
    k(f's_mul_i32 s{sT1}, s{sTF}, 192')
    k(f's_add_u32 s{sT0}, s{sT0}, s{sT1}')
    k(f's_add_u32 s{sT1}, s{sT0}, {WS_Z1}')
    k.srd(sZ1, sWS, sWS+1, 63*1536+192, f's{sT1}')
    k(f's_add_u32 s{sT1}, s{sT0}, {WS_H}')
    k.srd(sH, sWS, sWS+1, 63*1536+192, f's{sT1}')
    k(f's_lshl_b32 s{sT0}, s{sTT}, 7')
    k.srd(sB, sBSP, sBSP+1, 128, f's{sT0}')
    for r in range(24):
        k(f'v_mov_b32 v{ACC+r}, 0')
    def dma(stage, which):
        if which < 3:
            k(f's_add_u32 m0, s{sMZ}, {stage*STG + which*1024}')
            return f'buffer_load_dwordx4 v{vDZ+which}, s[{sZ}:{sZ+3}], s{sK} offen lds'
        else:
            k(f's_add_u32 m0, s{sMW}, {stage*STG + (which-3)*1024}')
            return f'buffer_load_dwordx4 v{vDW+which-3}, s[{sW}:{sW+3}], s{sK} offen lds'
    k(f's_mov_b32 s{sK}, 0')
    for st in range(NS):
        for q in range(5):
            ins = dma(st, q); k('s_nop 0'); k(ins)
        k(f's_add_u32 s{sK}, s{sK}, 128')
    NEX = 8
    for j in range(2):
        k(f'buffer_load_ushort v{vBS+j}, v{vEO+1}, s[{sB}:{sB+3}], 0 offen offset:{32*j}')
    for j in range(2):
        for i in range(3):
            r = vZ1 + 2*(j*3+i)
            k(f's_mov_b32 s{sT0}, {j*16*1536}')
            k(f'buffer_load_dwordx2 v[{r}:{r+1}], v{vEO}, s[{sZ1}:{sZ1+3}], s{sT0} offen offset:{i*32}')
    def reads(stage, fs):
        sset = 2 if stage >= 2 else 0
        so = (stage % 2) * STG
        out = []
        for ks in range(2):
            fb = FR + fs*40 + ks*20
            out += [f'ds_read_b128 v[{fb}:{fb+3}], v{vFA+sset+ks} offset:{so}',
                f'ds_read_b128 v[{fb+12}:{fb+15}], v{vFB+sset+ks} offset:{so}',
                f'ds_read_b128 v[{fb+16}:{fb+19}], v{vFB+sset+ks} offset:{so+2048}',
                f'ds_read_b128 v[{fb+4}:{fb+7}], v{vFA+sset+ks} offset:{so+2048}',
                f'ds_read_b128 v[{fb+8}:{fb+11}], v{vFA+sset+ks} offset:{so+4096}']
        return out
    def mfmas(fs):
        out = []
        for ks in range(2):
            fb = FR + fs*40 + ks*20
            for i in range(3):
                for j in range(2):
                    a = ACC + 4*(j*3+i)
                    out.append(f'v_mfma_f32_16x16x32_bf16 v[{a}:{a+3}], v[{fb+4*i}:{fb+4*i+3}], v[{fb+12+4*j}:{fb+15+4*j}], v[{a}:{a+3}]')
        return out
    NKS = 32
    k(f's_waitcnt vmcnt({5*(NS-1)+NEX})')
    k('s_barrier')
    k.stamp(1)
    for r in reads(0, 0): k(r)
    def gen_step(j):
        stage = j % NS
        last = j == NKS - 1
        issue = j + NS < NKS
        mf = mfmas(j % 2)
        if not last:
            lastg = min(j - 1 + NS, NKS - 1)
            wait = 5 * max(0, lastg - (j + 1))
            if j + 1 <= NS - 1: wait += NEX
            k(f's_waitcnt vmcnt({wait}) lgkmcnt(0)')
            k('s_barrier')
            rd = reads((stage + 1) % NS, (j + 1) % 2)
        else:
            k('s_waitcnt lgkmcnt(0)')
            rd = []
        q = 0
        for n, m in enumerate(mf):
            k(m)
            for _ in range(2):
                if rd: k(rd.pop(0))
            if issue and n in DMA_AT:
                ins = dma(stage, q); k('s_nop 0'); k(ins); q += 1
        if issue:
            k(f's_add_u32 s{sK}, s{sK}, 128')
    DMA_AT = (5, 6, 7, 8, 9)
    j = 0
    while j < NS:
        gen_step(j); j += 1
    nloop = (NKS - 2*NS) // NS
    k(f's_mov_b32 s{sCNT}, {nloop}')
    lab = k.newlabel('g2loop')
    k.label(lab)
    for s_ in range(NS):
        gen_step(NS + s_)
    k(f's_sub_u32 s{sCNT}, s{sCNT}, 1')
    k(f's_cmp_lg_u32 s{sCNT}, 0')
    k(f's_cbranch_scc1 {lab}')
    j = NS + nloop*NS
    while j < NKS:
        gen_step(j); j += 1
    k.stamp(2)
    k('s_nop 7')
    T = FR
    for j in range(2):
        k(f'v_lshlrev_b32 v{vBS+j}, 16, v{vBS+j}')
    for j in range(2):
        for i in range(3):
            a = ACC + 4*(j*3+i)
            z = vZ1 + 2*(j*3+i)
            t = T + 8*(j*3+i) % 40
            k(f'v_cvt_pk_bf16_f32 v{t}, v{a}, v{a+1}')
            k(f'v_cvt_pk_bf16_f32 v{t+1}, v{a+2}, v{a+3}')
            k(f'v_lshlrev_b32 v{a}, 16, v{t}')
            k(f'v_and_b32 v{a+1}, 0xffff0000, v{t}')
            k(f'v_lshlrev_b32 v{a+2}, 16, v{t+1}')
            k(f'v_and_b32 v{a+3}, 0xffff0000, v{t+1}')
            for r in range(4):
                k(f'v_add_f32 v{a+r}, v{vBS+j}, v{a+r}')
            k(f'v_cvt_pk_bf16_f32 v{t}, v{a}, v{a+1}')
            k(f'v_cvt_pk_bf16_f32 v{t+1}, v{a+2}, v{a+3}')
            k(f'v_lshlrev_b32 v{a}, 16, v{t}')
            k(f'v_and_b32 v{a+1}, 0xffff0000, v{t}')
            k(f'v_lshlrev_b32 v{a+2}, 16, v{t+1}')
            k(f'v_and_b32 v{a+3}, 0xffff0000, v{t+1}')
            k(f'v_lshlrev_b32 v{t+2}, 16, v{z}')
            k(f'v_and_b32 v{t+3}, 0xffff0000, v{z}')
            k(f'v_lshlrev_b32 v{t+4}, 16, v{z+1}')
            k(f'v_and_b32 v{t+5}, 0xffff0000, v{z+1}')
            for r in range(4):
                k(f'v_mul_f32 v{a+r}, v{t+2+r}, v{a+r}')
            k(f'v_cvt_pk_bf16_f32 v{z}, v{a}, v{a+1}')
            k(f'v_cvt_pk_bf16_f32 v{z+1}, v{a+2}, v{a+3}')
            k(f's_mov_b32 s{sT0}, {j*16*1536}')
            k(f'buffer_store_dwordx2 v[{z}:{z+1}], v{vEO}, s[{sH}:{sH+3}], s{sT0} offen offset:{i*32}')
    k.stamp(3)
    k.stamp_flush(4, sWS)
    return NS*STG, 140

if __name__ == '__main__':
    import sys
    k = KB('k2')
    k.stamps = len(sys.argv) > 1
    k('s_cmp_ge_u32 s2, 256')
    k('s_cbranch_scc1 k2_end')
    lds, nv = gemm2_role(k)
    k.label('k2_end')
    k('s_endpgm')
    open('g2.s', 'w').write(wrap('gemm2 test', [('k2_kernel', 256, 256, lds)], [('k2_kernel', k.text(), 256 if k.stamps else nv, 100)]))
```

```python
from asmlib import *
from layout import *

def rnd_unpack(k, a, t):
    k(f'v_cvt_pk_bf16_f32 v{t}, v{a}, v{a+1}')
    k(f'v_cvt_pk_bf16_f32 v{t+1}, v{a+2}, v{a+3}')
    k(f'v_lshlrev_b32 v{a}, 16, v{t}')
    k(f'v_and_b32 v{a+1}, 0xffff0000, v{t}')
    k(f'v_lshlrev_b32 v{a+2}, 16, v{t+1}')
    k(f'v_and_b32 v{a+3}, 0xffff0000, v{t+1}')
def unpack4(k, d, s):
    k(f'v_lshlrev_b32 v{d}, 16, v{s}')
    k(f'v_and_b32 v{d+1}, 0xffff0000, v{s}')
    k(f'v_lshlrev_b32 v{d+2}, 16, v{s+1}')
    k(f'v_and_b32 v{d+3}, 0xffff0000, v{s+1}')

def gemm3_role(k, NS=6):
    STG = 24576
    ATB = NS*STG
    sWO, sOUT, sWS = 4, 8, 10
    k.stamp(0)
    k(f's_load_dwordx2 s[4:5], s[0:1], {KA["w_out"]}')
    k(f's_load_dwordx2 s[8:9], s[0:1], {KA["out"]}')
    k(f's_load_dwordx2 s[10:11], s[0:1], {KA["ws"]}')
    sH, sW, sA, sO, sG = 12, 16, 20, 24, 28
    sTB, sDB, sWV, sKH, sKW, sMH, sMW, sT0, sT1, sCNT = 32, 33, 34, 35, 36, 37, 38, 39, 40, 41
    k(f's_and_b32 s{sT0}, s2, 7')
    k(f's_lshr_b32 s{sT1}, s2, 3')
    k(f's_lshl_b32 s{sTB}, s{sT0}, 1')
    k(f's_cmp_ge_u32 s{sT1}, 10')
    k(f's_cselect_b32 s{sT0}, 1, 0')
    k(f's_add_u32 s{sTB}, s{sTB}, s{sT0}')
    k(f's_mul_i32 s{sT0}, s{sT0}, 10')
    k(f's_sub_u32 s{sDB}, s{sT1}, s{sT0}')
    vL, vT, vT2, vT3, vT4 = 1, 2, 3, 4, 5
    vDH = 6
    vDW = 8
    vDA = 9
    vFB = 12
    vFA = 18
    vEA = 24
    vEO = 25
    vGO = 26
    vG = 28
    ACC = 32
    FR = 48
    k(f'v_lshrrev_b32 v{vT}, 6, v0')
    k(f'v_and_b32 v{vL}, 63, v0')
    k(f'v_readfirstlane_b32 s{sWV}, v{vT}')
    k(f'v_lshrrev_b32 v{vT}, 3, v{vL}')
    k(f'v_and_b32 v{vT2}, 7, v{vL}')
    k(f'v_lshrrev_b32 v{vT3}, 1, v{vT}')
    k(f'v_xor_b32 v{vT3}, v{vT2}, v{vT3}')
    k(f'v_lshlrev_b32 v{vT3}, 4, v{vT3}')
    k(f's_lshl_b32 s{sT0}, s{sWV}, 4')
    k(f'v_add_u32 v{vT4}, s{sT0}, v{vT}')
    k(f'v_mul_u32_u24 v{vT4}, 1536, v{vT4}')
    k(f'v_add_u32 v{vDH}, v{vT4}, v{vT3}')
    k(f'v_xor_b32 v{vT3}, 64, v{vT3}')
    k(f'v_add_u32 v{vDH+1}, v{vT4}, v{vT3}')
    k(f'v_add_u32 v{vDH+1}, {8*1536}, v{vDH+1}')
    k(f'v_and_b32 v{vT3}, 2, v{vT}')
    k(f's_and_b32 s{sT0}, s{sWV}, 1')
    k(f's_lshl_b32 s{sT0}, s{sT0}, 2')
    k(f'v_xor_b32 v{vT3}, v{vT3}, v{vT2}')
    k(f'v_xor_b32 v{vT3}, s{sT0}, v{vT3}')
    k(f'v_lshlrev_b32 v{vT3}, 4, v{vT3}')
    k(f's_lshl_b32 s{sT0}, s{sWV}, 3')
    k(f'v_add_u32 v{vT4}, s{sT0}, v{vT}')
    k(f'v_mul_u32_u24 v{vT4}, 1280, v{vT4}')
    k(f'v_add_u32 v{vDW}, v{vT4}, v{vT3}')
    k(f'v_lshrrev_b32 v{vT3}, 4, v{vL}')
    k(f's_lshl_b32 s{sT0}, s{sWV}, 3')
    k(f'v_add_u32 v{vT3}, s{sT0}, v{vT3}')
    k(f'v_lshlrev_b32 v{vT3}, 12, v{vT3}')
    k(f'v_and_b32 v{vT4}, 15, v{vL}')
    k(f'v_lshl_add_u32 v{vDA}, v{vT4}, 4, v{vT3}')
    k(f'v_add_u32 v{vDA+1}, {4*4096}, v{vDA}')
    k(f's_lshl_b32 s{sMH}, s{sWV}, 11')
    k(f's_lshl_b32 s{sMW}, s{sWV}, 10')
    k(f's_add_u32 s{sMW}, s{sMW}, 16384')
    k(f'v_lshrrev_b32 v{vT2}, 4, v{vL}')
    k(f'v_lshrrev_b32 v{vT3}, 1, v{vT4}')
    k(f'v_xor_b32 v{vT3}, v{vT3}, v{vT2}')
    k(f'v_lshlrev_b32 v{vT3}, 4, v{vT3}')
    k(f'v_lshl_add_u32 v{vT3}, v{vT4}, 7, v{vT3}')
    k(f's_lshr_b32 s{sT1}, s{sWV}, 1')
    k(f's_lshl_b32 s{sT0}, s{sT1}, 12')
    k(f'v_add_u32 v{vFB}, s{sT0}, v{vT3}')
    k(f'v_xor_b32 v{vFB+1}, 64, v{vFB}')
    k(f'v_lshrrev_b32 v{vT}, 2, v{vT4}')
    k(f'v_lshl_add_u32 v{vT3}, v{vT2}, 3, v{vT}')
    k(f'v_lshlrev_b32 v{vT3}, 7, v{vT3}')
    k(f'v_and_b32 v{vEA}, 3, v{vL}')
    k(f'v_lshl_add_u32 v{vT3}, v{vEA}, 3, v{vT3}')
    k(f'v_lshrrev_b32 v{vT}, 1, v{vT}')
    k(f'v_and_b32 v{vEO}, 1, v{vT2}')
    k(f'v_lshl_add_u32 v{vT}, v{vEO}, 1, v{vT}')
    k(f's_and_b32 s{sT0}, s{sWV}, 1')
    k(f's_lshl_b32 s{sT0}, s{sT0}, 1')
    k(f'v_xor_b32 v{vT}, s{sT0}, v{vT}')
    k(f'v_lshl_add_u32 v{vFA}, v{vT}, 5, v{vT3}')
    k(f'v_add_u32 v{vFA}, 16384, v{vFA}')
    k(f'v_xor_b32 v{vFA+1}, 32, v{vFA}')
    for st in (1, 2):
        for b in (vFB, vFA):
            k(f'v_add_u32 v{b+2*st}, {2*STG*st}, v{b}')
            k(f'v_add_u32 v{b+2*st+1}, {2*STG*st}, v{b+1}')
    k(f'v_lshrrev_b32 v{vT}, 2, v{vT4}')
    k(f'v_lshl_add_u32 v{vT}, v{vT2}, 2, v{vT}')
    k(f'v_lshlrev_b32 v{vT}, 8, v{vT}')
    k(f'v_lshl_add_u32 v{vEA}, v{vEA}, 3, v{vT}')
    k(f's_and_b32 s{sT0}, s{sWV}, 1')
    k(f's_lshl_b32 s{sT0}, s{sT0}, 13')
    k(f's_lshl_b32 s{sT1}, s{sT1}, 6')
    k(f's_add_u32 s{sT0}, s{sT0}, s{sT1}')
    k(f's_add_u32 s{sT0}, s{sT0}, {ATB}')
    k(f'v_add_u32 v{vEA}, s{sT0}, v{vEA}')
    k(f's_lshr_b32 s{sT1}, s{sWV}, 1')
    k(f's_lshl_b32 s{sT1}, s{sT1}, 5')
    k(f'v_add_u32 v{vT}, s{sT1}, v{vT4}')
    k(f'v_lshlrev_b32 v{vGO}, 3, v{vT}')
    k(f'v_mul_u32_u24 v{vEO}, 1280, v{vT}')
    k(f'v_and_b32 v{vT}, 1, v{vT2}')
    k(f'v_lshl_add_u32 v{vEO}, v{vT}, 5, v{vEO}')
    k(f'v_lshrrev_b32 v{vT}, 1, v{vT2}')
    k(f'v_lshl_add_u32 v{vEO}, v{vT}, 4, v{vEO}')
    k(f's_and_b32 s{sT0}, s{sWV}, 1')
    k(f's_lshl_b32 s{sT0}, s{sT0}, 6')
    k(f'v_add_u32 v{vEO}, s{sT0}, v{vEO}')
    k('s_waitcnt lgkmcnt(0)')
    k(f's_mul_i32 s{sT0}, s{sTB}, {128*1536}')
    k(f's_add_u32 s{sT0}, s{sT0}, {WS_H}')
    k.srd(sH, 10, 11, 128*1536, f's{sT0}')
    k(f's_lshl_b32 s{sT0}, s{sDB}, 7')
    k.srd(sW, 4, 5, 767*1280+128, f's{sT0}')
    k(f's_mov_b32 s{sKH}, 0')
    k(f's_mov_b32 s{sKW}, 0')
    def dma(stage, q):
        if q < 2:
            k(f's_add_u32 m0, s{sMH}, {stage*STG + q*1024}')
            return f'buffer_load_dwordx4 v{vDH+q}, s[{sH}:{sH+3}], s{sKH} offen lds'
        k(f's_add_u32 m0, s{sMW}, {stage*STG}')
        return f'buffer_load_dwordx4 v{vDW}, s[{sW}:{sW+3}], s{sKW} offen lds'
    def adv():
        k(f's_add_u32 s{sKH}, s{sKH}, 128')
        k(f's_add_u32 s{sKW}, s{sKW}, {64*1280}')
    for st in range(NS):
        for q in range(3):
            ins = dma(st, q); k('s_nop 0'); k(ins)
        adv()
    k(f's_lshl_b32 s{sT0}, s{sDB}, 18')
    k(f's_lshl_b32 s{sT1}, s{sTB}, 8')
    k(f's_add_u32 s{sT0}, s{sT0}, s{sT1}')
    k(f's_add_u32 s{sT0}, s{sT0}, {WS_AT}')
    k.srd(sA, 10, 11, 63*4096+256, f's{sT0}')
    k(f's_lshl_b32 s{sT0}, s{sTB}, 10')
    k(f's_add_u32 s{sT0}, s{sT0}, {WS_G}')
    k.srd(sG, 10, 11, 1024, f's{sT0}')
    k(f's_mul_i32 s{sT0}, s{sTB}, {128*1280}')
    k(f's_lshl_b32 s{sT1}, s{sDB}, 7')
    k(f's_add_u32 s{sT0}, s{sT0}, s{sT1}')
    k.srd(sO, 8, 9, 127*1280+128, f's{sT0}')
    for q in range(2):
        k(f's_add_u32 m0, s{sMH}, {ATB + q*1024}')
        k('s_nop 0')
        k(f'buffer_load_dwordx4 v{vDA+q}, s[{sA}:{sA+3}], 0 offen lds')
    for j in range(2):
        k(f'buffer_load_dwordx2 v[{vG+2*j}:{vG+2*j+1}], v{vGO}, s[{sG}:{sG+3}], 0 offen offset:{128*j}')
    NEX = 4
    for r in range(16):
        k(f'v_mov_b32 v{ACC+r}, 0')
    def reads(stage, fs):
        sset = 2*(stage // 2)
        so = (stage % 2) * STG
        out = []
        for ks in range(2):
            fb = FR + fs*32 + ks*16
            for i in range(2):
                for h in range(2):
                    out.append(f'ds_read_b64_tr_b16 v[{fb+4*i+2*h}:{fb+4*i+2*h+1}], v{vFA+sset+i} offset:{so + ks*4096 + h*512}')
                out.append(f'ds_read_b128 v[{fb+8+4*i}:{fb+11+4*i}], v{vFB+sset+ks} offset:{so + i*2048}')
        return out
    def mfmas(fs):
        out = []
        for ks in range(2):
            fb = FR + fs*32 + ks*16
            for i in range(2):
                for j in range(2):
                    a = ACC + 4*(j*2+i)
                    out.append(f'v_mfma_f32_16x16x32_bf16 v[{a}:{a+3}], v[{fb+4*i}:{fb+4*i+3}], v[{fb+8+4*j}:{fb+11+4*j}], v[{a}:{a+3}]')
        return out
    NKS = 12
    k(f's_waitcnt vmcnt({3*(NS-1)+NEX})')
    k('s_barrier')
    k.stamp(1)
    for r in reads(0, 0): k(r)
    for j in range(NKS):
        stage = j % NS
        last = j == NKS-1
        issue = j + NS < NKS
        mf = mfmas(j % 2)
        if not last:
            lastg = min(j - 1 + NS, NKS - 1)
            wait = 3 * max(0, lastg - (j + 1))
            if j + 1 <= NS - 1: wait += NEX
            k(f's_waitcnt vmcnt({wait}) lgkmcnt(0)')
            k('s_barrier')
            rd = reads((stage + 1) % NS, (j + 1) % 2)
        else:
            k('s_waitcnt lgkmcnt(0)')
            fb = FR + ((j+1) % 2)*32
            rd = [f'ds_read_b64_tr_b16 v[{fb+2*(jj*2+i)}:{fb+2*(jj*2+i)+1}], v{vEA} offset:{i*4096 + jj*32}' for jj in range(2) for i in range(2)]
        q = 0
        for n, m in enumerate(mf):
            k(m)
            for _ in range(3):
                if rd: k(rd.pop(0))
            if issue and n in (4, 5, 6):
                ins = dma(stage, q); k('s_nop 0'); k(ins); q += 1
        if issue: adv()
    k.stamp(2)
    AT = FR + (NKS % 2)*32
    T = FR + ((NKS+1) % 2)*32
    k('s_waitcnt lgkmcnt(0)')
    k('s_nop 4')
    for j in range(2):
        for i in range(2):
            a = ACC + 4*(j*2+i)
            at = AT + 2*(j*2+i)
            t = T + 12*(j*2+i) % 24
            res = T + 24 + 4*j + 2*i
            rnd_unpack(k, a, t)
            unpack4(k, t+2, at)
            for r in range(4):
                k(f'v_mul_f32 v{a+r}, v{vG+2*j+1}, v{a+r}')
                k(f'v_mul_f32 v{t+2+r}, v{vG+2*j}, v{t+2+r}')
            rnd_unpack(k, a, t)
            rnd_unpack(k, t+2, t)
            for r in range(4):
                k(f'v_add_f32 v{a+r}, v{t+2+r}, v{a+r}')
            k(f'v_cvt_pk_bf16_f32 v{res}, v{a}, v{a+1}')
            k(f'v_cvt_pk_bf16_f32 v{res+1}, v{a+2}, v{a+3}')
        res = T + 24 + 4*j
        k('s_nop 1')
        k(f'v_permlane16_swap_b32 v{res}, v{res+2}')
        k(f'v_permlane16_swap_b32 v{res+1}, v{res+3}')
        k(f's_mov_b32 s{sT0}, {j*16*1280}')
        k(f'buffer_store_dwordx4 v[{res}:{res+3}], v{vEO}, s[{sO}:{sO+3}], s{sT0} offen')
    k.stamp(3)
    k.stamp_flush(4, 10)
    return NS*STG + 16384, FR + 64

if __name__ == '__main__':
    import sys
    k = KB('k3')
    k.stamps = len(sys.argv) > 1
    k('s_cmp_ge_u32 s2, 160')
    k('s_cbranch_scc1 k3_end')
    lds, nv = gemm3_role(k)
    k.label('k3_end')
    k('s_endpgm')
    open('g3.s', 'w').write(wrap('gemm3 test', [('k3_kernel', 160, 512, lds)], [('k3_kernel', k.text(), 256 if k.stamps else nv, 100)]))
```

```python
WS_Z1  = 0x0000000
WS_Z2T = 0x0300000
WS_H   = 0x0600000
WS_UT  = 0x0900000
UT_PAD = 32
UT_PITCH = 2112
WS_AT  = 0x0C00000
WS_ST  = 0x0F00000
WS_G   = 0x1000000
WS_KL  = 0x1100000
KA = dict(u=0, A_re=8, A_im=16, B_re=24, B_im=32, C_re=40, C_im=48, log_dt=56, Dskip=64, x=72,
          w_in=80, w_sp=88, b_sp=96, w_out=104, gate_w=112, out=120, dbg=128, ws=136)
```

```python
from asmlib import *
from layout import *
from gemm3 import rnd_unpack, unpack4
from gemm1 import f2u, LOG2E
import math

WLDS = 20480
R0, R1O, R1E, R2O, R2E, R3O, R3E = [2*x for x in (0, 304, 496, 688, 816, 944, 1024)]
UB = 2304; U0 = UB + 512
C3B = 6912; C3_0 = C3B + 32
C5B = 10560; C5_0 = C5B + 32
C7B = 13696; C7_0 = C7B + 32
C9B = 15808; C9_0 = C9B + 32
F2B = 17920; F2_0 = F2B + 32
XY = 2304; XYP = 272
XROWS = list(range(8)) + [258, 262, 260, 264, 516, 520, 772, 776, 1032, 1288, 1544, 1800, 8]

def cmul(k, P, A, B, t):
    k(f'v_pk_mul_f32 v[{t}:{t+1}], v[{A}:{A+1}], v[{B}:{B+1}] op_sel:[0,0] op_sel_hi:[0,1]')
    k(f'v_pk_fma_f32 v[{P}:{P+1}], v[{A}:{A+1}], v[{B}:{B+1}], v[{t}:{t+1}] op_sel:[1,1,0] op_sel_hi:[1,0,1] neg_lo:[0,1,0]')

def stream(k, items, ring, nbuf, ahead):
    n = len(items)
    issued = []
    def issue(i):
        r = items[i][0](ring + 4*(i % nbuf))
        for x in r: k(x)
        issued.append(len(r))
    for i in range(min(ahead, n)): issue(i)
    for i in range(n):
        after = sum(issued[i+1:])
        assert after <= 15
        k(f's_waitcnt lgkmcnt({after})')
        m = items[i][1](ring + 4*(i % nbuf))
        k(m[0])
        if i + ahead < n: issue(i + ahead)
        for x in m[1:]: k(x)

def ssm_role(k, sID, use_u2=False):
    sP = 4
    k(f's_load_dwordx8 s[4:11], s[0:1], {KA["A_re"]}')
    k(f's_load_dwordx8 s[12:19], s[0:1], {KA["C_re"]}')
    k(f's_load_dwordx2 s[20:21], s[0:1], {KA["ws"]}')
    sWV, sD, sT0, sT1, sLB, sCNT, sDS, sPO = 22, 23, 24, 25, 26, 27, 28, 29
    SR = 32
    sUT, sAT = 56, 60
    vL, vX, vKG, vT, vT2, vT3 = 1, 2, 3, 4, 5, 6
    vPO = 7
    vXW = 8
    vXR = 9
    vDT = 10
    vUO = 11
    PS = 12
    UL = 20
    DK = 52
    W0 = 68
    k(f'v_lshrrev_b32 v{vT}, 6, v0')
    k(f'v_and_b32 v{vL}, 63, v0')
    k(f'v_readfirstlane_b32 s{sWV}, v{vT}')
    k(f'v_lshlrev_b32 v{vPO}, 1, v{vL}')
    k(f's_lshl_b32 s{sD}, s{sID}, 2')
    k(f's_add_u32 s{sD}, s{sD}, s{sWV}')
    k(f's_mul_i32 s{sLB}, s{sWV}, {WLDS}')
    k(f's_mul_i32 s{sT0}, s{sD}, 384')
    for r in range(6): k(f'v_mov_b32 v{PS+r}, 0')
    k('s_waitcnt lgkmcnt(0)')
    k(f's_lshr_b32 s{sT1}, s{sD}, 1')
    k(f's_lshl_b32 s{sT1}, s{sT1}, 2')
    k(f's_load_dword s{sDS+2}, s[16:17], s{sT1}')
    k(f's_load_dword s{sDS+3}, s[18:19], s{sT1}')
    for a in range(6):
        k.srd(SR+4*a, 4+2*a, 5+2*a, 384, f's{sT0}')
    def param_loads(soff):
        for a in range(6):
            k(f'buffer_load_short_d16_hi v{PS+a}, v{vPO}, s[{SR+4*a}:{SR+4*a+3}], {soff} offen')
    param_loads('0')
    k(f's_mul_i32 s{sT0}, s{sD}, {UT_PITCH*2}')
    k(f's_add_u32 s{sT0}, s{sT0}, {WS_UT}')
    k.srd(sUT, 20, 21, UT_PITCH*2, f's{sT0}')
    k(f's_lshl_b32 s{sT0}, s{sD}, 12')
    k(f's_add_u32 s{sT0}, s{sT0}, {WS_AT}')
    k.srd(sAT, 20, 21, 4096, f's{sT0}')
    k(f'v_lshlrev_b32 v{vUO}, 4, v{vL}')
    for q in range(4):
        for h in range(2):
            r = UL + 8*q + 4*h
            k(f'buffer_load_dwordx4 v[{r}:{r+3}], v{vUO}, s[{sUT}:{sUT+3}], 0 offen offset:{(UT_PAD - 20 + 512*q + 8*h)*2}')
    k(f'v_and_b32 v{vX}, 15, v{vL}')
    k(f'v_lshrrev_b32 v{vKG}, 4, v{vL}')
    k(f'v_lshlrev_b32 v{vXW}, 2, v{vL}')
    k(f'v_add_u32 v{vXW}, s{sLB}, v{vXW}')
    k(f'v_and_b32 v{vT}, 31, v{vL}')
    k(f'v_mul_u32_u24 v{vT}, {XYP}, v{vT}')
    k(f'v_lshrrev_b32 v{vT2}, 5, v{vL}')
    k(f'v_lshl_add_u32 v{vT}, v{vT2}, 4, v{vT}')
    k(f'v_add_u32 v{vXR}, s{sLB}, v{vT}')
    for r in range(4): k(f'v_mov_b32 v{W0+r}, 0')
    k(f'v_lshlrev_b32 v{vT}, 4, v{vL}')
    k(f'v_add_u32 v{vT}, s{sLB}, v{vT}')
    k(f'ds_write_b128 v{vT}, v[{W0}:{W0+3}]')
    k(f'ds_write_b128 v{vT}, v[{W0}:{W0+3}] offset:1024')
    k('s_mov_b64 exec, 0xffff')
    k(f'ds_write_b128 v{vT}, v[{W0}:{W0+3}] offset:2048')
    k('s_mov_b64 exec, -1')
    for r in range(16): k(f'v_mov_b32 v{DK+r}, 0')
    k('s_waitcnt lgkmcnt(0)')
    k(f's_and_b32 s{sT0}, s{sD}, 1')
    k(f's_cmp_eq_u32 s{sT0}, 1')
    for (src, dst) in ((sDS+2, sT1), (sDS+3, sDS)):
        k(f's_lshl_b32 s{sT0}, s{src}, 16')
        k(f's_and_b32 s{src}, s{src}, 0xffff0000')
    k.L = k.L[:-5]
    k(f's_lshl_b32 s{sT1}, s{sDS+2}, 16')
    k(f's_and_b32 s{sDS+2}, s{sDS+2}, 0xffff0000')
    k(f's_lshl_b32 s{sDS}, s{sDS+3}, 16')
    k(f's_and_b32 s{sDS+3}, s{sDS+3}, 0xffff0000')
    k(f's_bitcmp1_b32 s{sD}, 0')
    k(f's_cselect_b32 s{sT1}, s{sDS+2}, s{sT1}')
    k(f's_cselect_b32 s{sDS}, s{sDS+3}, s{sDS}')
    Lhi = f2u(LOG2E); import struct
    Lhi_f = struct.unpack('<f', struct.pack('<I', Lhi))[0]
    Llo = LOG2E - Lhi_f
    k(f'v_mov_b32 v{vT}, s{sT1}')
    k(f's_mov_b32 s{sT0}, {hex(Lhi)}')
    k(f'v_mul_f32 v{vT2}, s{sT0}, v{vT}')
    k(f'v_fma_f32 v{vT3}, v{vT}, s{sT0}, -v{vT2}')
    k(f'v_fmac_f32 v{vT3}, {hex(f2u(Llo))}, v{vT}')
    k(f'v_exp_f32 v{vT2}, v{vT2}')
    k(f'v_mul_f32 v{vT3}, {hex(f2u(math.log(2.0)))}, v{vT3}')
    k(f'v_fma_f32 v{vDT}, v{vT2}, v{vT3}, v{vT2}')
    k(f'v_cvt_pk_bf16_f32 v{vDT}, v{vDT}, v{vDT}')
    k(f'v_lshlrev_b32 v{vDT}, 16, v{vDT}')
    A2, B2 = W0, W0+1
    E1, E8, E16, E256, E512 = W0+2, W0+4, W0+6, W0+8, W0+10
    TT = W0+12
    T2 = W0+14
    XV = W0+16
    xreg = {}
    nxt = XV
    for l in list(range(9)) + [516, 520, 1032, 1544]:
        xreg[l] = nxt; nxt += 2
    TX = nxt; nxt += 2
    YA, YB = nxt, nxt+2; nxt += 4
    PK = nxt; nxt += 4
    FA = nxt; nxt += 32
    k(f's_mov_b32 s{sCNT}, 0')
    k(f's_mov_b32 s{sPO}, 0')
    lp = k.newlabel('kg')
    k.label(lp)
    lw = k.newlabel('kgw')
    k(f's_cmp_lg_u32 s{sCNT}, 0')
    k(f's_cbranch_scc1 {lw}')
    k('s_waitcnt vmcnt(8)')
    k(f's_branch {lw}b')
    k.label(lw)
    k('s_waitcnt vmcnt(0)')
    k.label(lw + 'b')
    X0 = xreg[0]
    k(f'v_mul_f32 v{A2}, v{vDT}, v{PS}')
    k(f'v_mul_f32 v{B2}, v{vDT}, v{PS+1}')
    k(f'v_pk_mul_f32 v[{TT}:{TT+1}], v[{PS+2}:{PS+3}], v[{vDT}:{vDT+1}] op_sel_hi:[1,0]')
    k(f'v_mul_f32 v{A2}, {hex(f2u(LOG2E))}, v{A2}')
    k(f'v_mul_f32 v{B2}, {hex(f2u(1/(2*math.pi)))}, v{B2}')
    cmul(k, X0, PS+4, TT, T2)
    k(f's_add_u32 s{sPO}, s{sPO}, 128')
    k(f's_nop 0')
    param_loads(f's{sPO}')
    def anchor(E, l, t):
        if l == 1:
            k(f'v_exp_f32 v{t}, v{A2}')
            k(f'v_fract_f32 v{t+1}, v{B2}')
        else:
            k(f'v_mul_f32 v{t}, {hex(f2u(float(l)))}, v{A2}')
            k(f'v_mul_f32 v{t+1}, {hex(f2u(float(l)))}, v{B2}')
            k(f'v_exp_f32 v{t}, v{t}')
            k(f'v_fract_f32 v{t+1}, v{t+1}')
        k(f'v_cos_f32 v{E}, v{t+1}')
        k(f'v_sin_f32 v{E+1}, v{t+1}')
        k('s_nop 0')
        k(f'v_pk_mul_f32 v[{E}:{E+1}], v[{E}:{E+1}], v[{t}:{t+1}] op_sel_hi:[1,0]')
    anchor(E1, 1, TT); anchor(E8, 8, T2); anchor(E16, 16, TT); anchor(E256, 256, T2); anchor(E512, 512, TT)
    pk = [0]
    def putX(l, reg):
        row = XROWS.index(l)
        p = PK + (pk[0] % 4); pk[0] += 1
        k(f'v_cvt_pk_bf16_f32 v{p}, v{reg}, -v{reg+1}')
        k(f'ds_write_b32 v{vXW}, v{p} offset:{XY + row*XYP}')
    def putY(j, reg):
        p = PK + (pk[0] % 4); pk[0] += 1
        k(f'v_cvt_pk_bf16_f32 v{p}, v{reg}, v{reg+1}')
        k(f'ds_write_b32 v{vXW}, v{p} offset:{XY + (21+j)*XYP}')
    putX(0, X0)
    k(f'v_mov_b32 v{PK+3}, 0x3f80')
    k(f'ds_write_b32 v{vXW}, v{PK+3} offset:{XY + 21*XYP}')
    putY(1, E8); putY(2, E16)
    xs = [(h, xreg[h], xreg[h-1], E1) for h in range(1, 9)]
    xs += [(258, TX, xreg[2], E256), (260, TX, xreg[4], E256), (262, TX, xreg[6], E256), (264, TX, xreg[8], E256),
           (516, xreg[516], xreg[4], E512), (520, xreg[520], xreg[8], E512), (772, TX, xreg[516], E256), (776, TX, xreg[520], E256),
           (1032, xreg[1032], xreg[520], E512), (1288, TX, xreg[1032], E256), (1544, xreg[1544], xreg[1032], E512), (1800, TX, xreg[1544], E256)]
    ya_src, yb_src = E8, E16
    for j in range(3, 32):
        if j % 2 == 1:
            cmul(k, YA, ya_src, E16, TT); ya_src = YA; putY(j, YA)
        else:
            cmul(k, YB, yb_src, E16, T2); yb_src = YB; putY(j, YB)
        if xs:
            l, dst, a, b = xs.pop(0)
            cmul(k, dst, a, b, FA); putX(l, dst)
    assert not xs
    k('s_waitcnt lgkmcnt(0)')
    items = []
    for ks in range(8):
        def rd(b, ks=ks):
            return [f'ds_read_b128 v[{b}:{b+3}], v{vXR} offset:{XY + ks*32}',
                    f'ds_read_b128 v[{b+16}:{b+19}], v{vXR} offset:{XY + 21*XYP + ks*32}']
        def mm(b):
            return [f'v_mfma_f32_32x32x16_bf16 v[{DK}:{DK+15}], v[{b}:{b+3}], v[{b+16}:{b+19}], v[{DK}:{DK+15}]']
        items.append((rd, mm))
    stream(k, items, FA, 4, 3)
    k(f's_add_u32 s{sCNT}, s{sCNT}, 1')
    k(f's_cmp_lt_u32 s{sCNT}, 3')
    k(f's_cbranch_scc1 {lp}')
    for q in range(4):
        k(f's_add_u32 m0, s{sLB}, {U0 + 1024*q - (UT_PAD*2 + 1024*q)}')
        k('s_nop 0')
        k(f'buffer_load_dwordx4 v{vUO}, s[{sUT}:{sUT+3}], 0 offen offset:{UT_PAD*2 + 1024*q} lds')
    V = W0
    k(f'v_mov_b32 v{V}, 0')
    k(f'v_mov_b32 v{V+1}, 0')
    k(f'v_lshlrev_b32 v{vT}, 3, v{vL}')
    k(f'v_add_u32 v{vT}, s{sLB}, v{vT}')
    k(f'ds_write_b64 v{vT}, v[{V}:{V+1}] offset:{UB}')
    k(f'v_add_u32 v{vUO}, s{sLB}, v{vUO}')
    def windows(qa, full):
        Ue = V
        lo = -4 if full else -2
        hi = 11 if full else 9
        ue = lambda i, c=0: Ue + 2*(i+4) + c
        for c in range(2):
            src = UL + 8*(qa + c)
            for i in range(lo, hi+1):
                d = src + (i+4)//2
                if (i+4) % 2 == 0: k(f'v_lshlrev_b32 v{ue(i,c)}, 16, v{d}')
                else: k(f'v_and_b32 v{ue(i,c)}, 0xffff0000, v{d}')
        Pe = Ue + 32
        pe = lambda i, c=0: Pe + 2*(i+4) + c
        Ce = Pe + 30
        ce = lambda i, c=0: Ce + 2*(i+3) + c
        PKR = Ce + 22
        def add(d, a, b): k(f'v_pk_add_f32 v[{d}:{d+1}], v[{a}:{a+1}], v[{b}:{b+1}]')
        def out(fn, base0, lim):
            for c in range(2):
                q = qa + c
                nl = (lim - 512*q + 7) // 8
                nl = max(0, min(64, nl))
                if nl == 0: continue
                pr = PKR + 4*c
                for e in range(4):
                    k(f'v_cvt_pk_bf16_f32 v{pr+e}, v{fn(2*e, c)}, v{fn(2*e+1, c)}')
                if nl < 64:
                    m = (1 << nl) - 1
                    k(f's_mov_b32 exec_lo, {hex(m & 0xffffffff)}'); k(f's_mov_b32 exec_hi, {hex(m >> 32)}')
                k(f'ds_write_b128 v{vUO}, v[{pr}:{pr+3}] offset:{base0 + 1024*q}')
                if nl < 64: k('s_mov_b64 exec, -1')
        for i in range(lo, hi): add(pe(i), ue(i), ue(i+1))
        if full: out(pe, F2B, 1056)
        c3lo = -3 if full else -1
        for i in range(c3lo, 8): add(ce(i), pe(i-1), ue(i+1))
        out(ce, C3B, 1824)
        for i in range(7, c3lo, -1): add(ce(i), ce(i-1), pe(i+1))
        out(ce, C5B, 1568)
        if full:
            for i in range(7, -2, -1): add(ce(i), ce(i-1), pe(i+2))
            out(ce, C7B, 1056)
            for i in range(7, -1, -1): add(ce(i), ce(i-1), pe(i+3))
            out(ce, C9B, 1056)
    windows(0, True)
    windows(2, True if FULL23 else False)
    vJ, vH = vT, vT2
    k(f'v_and_b32 v{vJ}, 31, v{vL}')
    k(f'v_lshrrev_b32 v{vH}, 5, v{vL}')
    a0, a1, a2, a3 = V, V+1, V+2, V+3
    p = V + 4
    k(f'v_lshlrev_b32 v{a0}, 4, v{vJ}')
    k(f'v_lshl_add_u32 v{a0}, v{vH}, 3, v{a0}')
    k(f'v_sub_u32 v{a0}, s{sLB}, v{a0}')
    k(f'v_cvt_pk_bf16_f32 v{p}, v{DK+3}, v{DK+2}')
    k(f'v_cvt_pk_bf16_f32 v{p+1}, v{DK+1}, v{DK}')
    k(f'v_add_u32 v{a0}, {R0 + 568}, v{a0}')
    k(f'ds_write_b64 v{a0}, v[{p}:{p+1}]')
    k(f'v_cvt_pk_bf16_f32 v{p+2}, v{DK+5}, v{DK+4}')
    k(f'v_cvt_pk_bf16_f32 v{p+3}, v{DK+7}, v{DK+6}')
    k(f'v_cvt_pk_bf16_f32 v{p+4}, v{DK+8}, v{DK+9}')
    k(f'v_cvt_pk_bf16_f32 v{p+5}, v{DK+10}, v{DK+11}')
    k(f'v_cvt_pk_bf16_f32 v{p+6}, v{DK+8}, v{DK+8}')
    k(f'v_lshlrev_b32 v{a1}, 2, v{vJ}')
    k(f'v_sub_u32 v{a1}, s{sLB}, v{a1}')
    k(f'v_add_u32 v{a1}, 252, v{a1}')
    k(f'v_lshlrev_b32 v{a2}, 1, v{vJ}')
    k(f'v_sub_u32 v{a2}, s{sLB}, v{a2}')
    k(f'v_add_u32 v{a2}, {2*63}, v{a2}')
    k(f'v_lshrrev_b32 v{a3}, 1, v{vJ}')
    k(f'v_lshlrev_b32 v{a3}, 1, v{a3}')
    k(f'v_sub_u32 v{a3}, s{sLB}, v{a3}')
    k(f'v_and_b32 v{vH}, 1, v{vJ}')
    k(f'v_mul_u32_u24 v{vH}, {R3E - R3O}, v{vH}')
    k(f'v_add3_u32 v{a3}, v{a3}, v{vH}, {2*(63-48)}')
    k('s_mov_b32 exec_hi, 0')
    k(f'ds_write_b32 v{a1}, v{p+2} offset:{R1O}')
    k(f'ds_write_b32 v{a1}, v{p+3} offset:{R1E}')
    k(f'ds_write_b16 v{a3}, v{p+4} offset:{R3O + 96}')
    k(f'ds_write_b16_d16_hi v{a3}, v{p+4} offset:{R3O + 64}')
    k(f'ds_write_b16 v{a3}, v{p+5} offset:{R3O + 32}')
    k(f'ds_write_b16_d16_hi v{a3}, v{p+5} offset:{R3O}')
    k('s_mov_b32 exec_lo, 0x80000000')
    k(f'ds_write_b16 v{a1}, v{p+3} offset:{R1O - 2}')
    k('s_mov_b32 exec_lo, 0')
    k('s_mov_b32 exec_hi, -1')
    k(f'ds_write_b16_d16_hi v{a2}, v{p+2} offset:{R2O + 64}')
    k(f'ds_write_b16 v{a2}, v{p+2} offset:{R2E + 64}')
    k(f'ds_write_b16_d16_hi v{a2}, v{p+3} offset:{R2O}')
    k(f'ds_write_b16 v{a2}, v{p+3} offset:{R2E}')
    k('s_mov_b32 exec_hi, 0x80000000')
    k(f'v_mov_b32 v{a0}, s{sLB}')
    k(f'ds_write_b32 v{a0}, v{p+6} offset:{R0 + 60}')
    k('s_mov_b64 exec, -1')
    vK0, vK1, vK2, vK3, vU, vD1, vD2, vD3, vDF, vR4, vC4 = V+12, V+13, V+14, V+15, V+16, V+17, V+18, V+19, V+20, V+21, V+22
    vEU, vEO = V+23, V+24
    k(f'v_lshlrev_b32 v{vT}, 4, v{vKG}')
    k(f'v_lshl_add_u32 v{vT2}, v{vX}, 1, v{vT}')
    k(f'v_sub_u32 v{vK0}, s{sLB}, v{vT2}')
    k(f'v_add_u32 v{vK0}, {R0 + 2*(295-256)}, v{vK0}')
    k(f'v_add_u32 v{vT3}, s{sLB}, v{vT}')
    k(f'v_lshlrev_b32 v{vT2}, 3, v{vX}')
    k(f'v_sub_u32 v{vK1}, v{vT3}, v{vT2}')
    k(f'v_add_u32 v{vK1}, 120, v{vK1}')
    k(f'v_lshlrev_b32 v{vT2}, 2, v{vX}')
    k(f'v_sub_u32 v{vK2}, v{vT3}, v{vT2}')
    k(f'v_add_u32 v{vK2}, 60, v{vK2}')
    k(f'v_and_b32 v{vT2}, 1, v{vKG}')
    k(f'v_lshrrev_b32 v{vT3}, 1, v{vKG}')
    k(f'v_mul_u32_u24 v{vK3}, {R3E - R3O}, v{vT3}')
    k(f'v_lshl_add_u32 v{vK3}, v{vT2}, 4, v{vK3}')
    k(f'v_lshlrev_b32 v{vR4}, 1, v{vX}')
    k(f'v_sub_u32 v{vK3}, v{vK3}, v{vR4}')
    k(f'v_add_u32 v{vK3}, s{sLB}, v{vK3}')
    k(f'v_lshlrev_b32 v{vU}, 5, v{vX}')
    k(f'v_sub_u32 v{vU}, v{vU}, v{vT}')
    k(f'v_add_u32 v{vU}, s{sLB}, v{vU}')
    k(f'v_lshrrev_b32 v{vR4}, 2, v{vX}')
    k(f'v_and_b32 v{vC4}, 3, v{vX}')
    k(f'v_lshlrev_b32 v{vC4}, 3, v{vC4}')
    k(f'v_add_u32 v{vC4}, s{sLB}, v{vC4}')
    k(f'v_lshl_add_u32 v{vD1}, v{vKG}, 3, v{vR4}')
    k(f'v_lshl_add_u32 v{vD2}, v{vD1}, 4, v{vC4}')
    k(f'v_lshl_add_u32 v{vD1}, v{vD1}, 3, v{vC4}')
    k(f'v_lshl_add_u32 v{vD3}, v{vT2}, 3, v{vR4}')
    k(f'v_lshl_add_u32 v{vD3}, v{vD3}, 5, v{vC4}')
    k(f'v_mul_u32_u24 v{vT3}, {(C9_0 - 32) - (C7_0 - 16)}, v{vT3}')
    k(f'v_add_u32 v{vD3}, v{vT3}, v{vD3}')
    k(f'v_lshl_add_u32 v{vDF}, v{vKG}, 2, v{vR4}')
    k(f'v_lshl_add_u32 v{vDF}, v{vDF}, 5, v{vC4}')
    k(f'v_lshlrev_b32 v{vEO}, 5, v{vX}')
    k(f'v_lshl_add_u32 v{vEO}, v{vKG}, 3, v{vEO}')
    k(f'v_add_u32 v{vEU}, s{sLB}, v{vEO}')
    ACC = V + 28
    KF = ACC + 32
    RG = KF + 40
    FX = RG + 32
    NVS = FX + 4
    for r in range(32): k(f'v_mov_b32 v{ACC+r}, 0')
    k(f'v_mov_b32 v{vT}, s{sLB}')
    k(f'ds_read_u16 v{FX+2}, v{vT} offset:{R2E + 64}')
    for c in range(4):
        k(f'ds_read_b128 v[{KF+4*c}:{KF+4*c+3}], v{vK3} offset:{R3O + 30 + 32*c}')
    for li, base in enumerate((R2O, R2E)):
        for c in range(3):
            r = KF + 16 + 12*li + 4*c
            k(f'ds_read_b128 v[{r}:{r+3}], v{vK2} offset:{base + 64*c}')
    k(f'v_lshlrev_b32 v{vT2}, 2, v{vKG}')
    k(f'v_sub_u32 v{vT2}, v{vX}, v{vT2}')
    k('s_waitcnt lgkmcnt(10)')
    k(f'v_lshlrev_b32 v{FX+3}, 16, v{FX+2}')
    for half in range(2):
        k(f'v_cmp_eq_u32 vcc, {2*half}, v{vT2}')
        k(f'v_mov_b32 v{FX+half}, 0')
        k(f'v_cmp_eq_u32 s[{sT0}:{sT0+1}], {2*half+1}, v{vT2}')
        k(f'v_cndmask_b32 v{FX+half}, v{FX+half}, v{FX+2}, vcc')
        k('s_nop 0')
        k(f'v_cndmask_b32 v{FX+half}, v{FX+half}, v{FX+3}, s[{sT0}:{sT0+1}]')
    acc = lambda T: f'v[{ACC+4*T}:{ACC+4*T+3}]'
    def M(T, a, b): return f'v_mfma_f32_16x16x32_bf16 {acc(T)}, v[{a}:{a+3}], v[{b}:{b+3}], {acc(T)}'
    def trp(addr, off, hstep):
        return lambda b: [f'ds_read_b64_tr_b16 v[{b}:{b+1}], v{addr} offset:{off}',
                          f'ds_read_b64_tr_b16 v[{b+2}:{b+3}], v{addr} offset:{off + hstep}']
    items = []
    for cp in range(4):
        items.append((trp(vD3, C7_0 - 16 + 512*cp, 128),
                      lambda b, cp=cp: [M(4 + cp + n, b, KF + 4*(3 - n)) for n in range(4 - cp)]))
    for T in range(4, 8):
        items.append((lambda b, T=T: [f'ds_read_b64_tr_b16 v[{b}:{b+1}], v{vDF} offset:{F2_0 - 8 + 512*(T-4)}'],
                      lambda b, T=T: [f'v_mfma_f32_16x16x16_bf16 {acc(T)}, v[{b}:{b+1}], v[{FX}:{FX+1}], {acc(T)}']))
    for cp in range(6):
        for li, base in enumerate((C3_0 - 24, C5_0 - 32)):
            items.append((trp(vD2, base + 512*cp, 64),
                          lambda b, cp=cp, li=li: [M(cp + 2 + n, b, KF + 16 + 12*li + 4*(2 - n)) for n in range(3) if cp + 2 + n <= 7]))
    k('s_waitcnt lgkmcnt(0)')
    stream(k, items, RG, 8, 6)
    k(f'v_lshlrev_b32 v{vT}, 4, v{vL}')
    for q in range(4):
        k(f's_add_u32 m0, s{sLB}, {C7B - (UT_PAD-14)*2}')
        k('s_nop 0')
        k(f'buffer_load_dwordx4 v{vT}, s[{sUT}:{sUT+3}], 0 offen offset:{(UT_PAD-14)*2 + 1024*q} lds')
    for sg in range(9):
        k(f'ds_read_b128 v[{KF+4*sg}:{KF+4*sg+3}], v{vK0} offset:{64*(8-sg)}')
    k('s_waitcnt vmcnt(4)')
    items = []
    for phi in range(-7, 57):
        T = -((-phi) // 8)
        def mm(b, phi=phi, T=T):
            o = [M(T, KF + 4*(8*T - phi), b)]
            if phi % 8 == 0 and T + 1 <= 7: o.append(M(T + 1, KF + 32, b))
            return o
        items.append((lambda b, phi=phi: [f'ds_read_b128 v[{b}:{b+3}], v{vU} offset:{U0 + 16 + 64*phi}'], mm))
    k('s_waitcnt lgkmcnt(0)')
    stream(k, items, RG, 8, 6)
    for li, base in enumerate((R1O, R1E)):
        for c in range(4):
            r = KF + 16*li + 4*c
            k(f'ds_read_b128 v[{r}:{r+3}], v{vK1} offset:{base + 64*c}')
    k('s_waitcnt vmcnt(0)')
    items = []
    for cp in range(14):
        for li, base in enumerate((C7B, C3_0 - 32)):
            T1 = cp//2 + 1
            def mm(b, cp=cp, li=li, T1=T1):
                o = [M(T1, b, KF + 16*li + 4*(cp % 2 + 2))]
                if T1 + 1 <= 7: o.append(M(T1 + 1, b, KF + 16*li + 4*(cp % 2)))
                return o
            items.append((trp(vD1, base + 256*cp, 32), mm))
    k('s_waitcnt lgkmcnt(0)')
    stream(k, items, RG, 8, 6)
    for T in range(8):
        k(f'ds_read_b64 v[{KF+2*T}:{KF+2*T+1}], v{vEU} offset:{U0 + 512*T}')
    k(f's_mov_b32 s{sDS+1}, s{sDS}')
    for T in range(8):
        a = ACC + 4*T
        t = RG + 8*(T % 4)
        k(f's_waitcnt lgkmcnt({7-T})')
        unpack4(k, t, KF + 2*T)
        for r in (0, 2):
            k(f'v_pk_mul_f32 v[{t+r}:{t+r+1}], v[{t+r}:{t+r+1}], s[{sDS}:{sDS+1}]')
        rnd_unpack(k, a, t+4)
        rnd_unpack(k, t, t+6)
        for r in (0, 2):
            k(f'v_pk_add_f32 v[{a+r}:{a+r+1}], v[{a+r}:{a+r+1}], v[{t+r}:{t+r+1}]')
        k(f'v_cvt_pk_bf16_f32 v{t+4}, v{a}, v{a+1}')
        k(f'v_cvt_pk_bf16_f32 v{t+5}, v{a+2}, v{a+3}')
        k(f'buffer_store_dwordx2 v[{t+4}:{t+5}], v{vEO}, s[{sAT}:{sAT+3}], 0 offen offset:{512*T}')
    return 4*WLDS, max(NVS, nxt, V + 32 + 30 + 22 + 8)

FULL23 = True
if __name__ == '__main__':
    import sys
    k = KB('ks')
    k('s_cmp_ge_u32 s2, 160')
    k('s_cbranch_scc1 ks_end')
    lds, nv = ssm_role(k, 2)
    k.label('ks_end')
    k('s_endpgm')
    print('nv', nv)
    open('gs.s', 'w').write(wrap('ssm test', [('ks_kernel', 160, 256, lds)], [('ks_kernel', k.text(), nv, 100)]))
```

```python
import sys
from asmlib import *
from layout import *
import gemm1, gemm2, gemm3, ssm

HEADER = open('gated_mix__ssm_conv_s4__mixer_gmlp__prompt.s.ref').read().split('\n')
HEADER = [l[2:] for l in HEADER if l.startswith('; ') and '@launch' not in l and 'Override' not in l and 'grid=ceil' not in l]

def build(path, extra_empty=0, stamps=False):
    k1 = KB('k1'); k1.stamps = stamps
    k1('s_cmp_ge_u32 s2, 256'); k1('s_cbranch_scc1 k1_end')
    lds1, nv1 = gemm1.gemm1_role(k1)
    k1.label('k1_end'); k1('s_endpgm')
    k2 = KB('k2')
    k2('s_cmp_ge_u32 s2, 256'); k2('s_cbranch_scc1 k2_ssm')
    lds2, nv2 = gemm2.gemm2_role(k2)
    k2('s_endpgm')
    k2.label('k2_ssm')
    k2('s_cmp_ge_u32 s2, 416'); k2('s_cbranch_scc1 k2_end')
    k2('s_sub_u32 s3, s2, 256')
    lds2b, nv2b = ssm.ssm_role(k2, 3)
    k2.label('k2_end'); k2('s_endpgm')
    k3 = KB('k3')
    k3('s_cmp_ge_u32 s2, 160'); k3('s_cbranch_scc1 k3_end')
    lds3, nv3 = gemm3.gemm3_role(k3)
    k3.label('k3_end'); k3('s_endpgm')
    launches = [('gm1_kernel', 256, 512, lds1), ('gm2_kernel', 416, 256, max(lds2, lds2b)), ('gm3_kernel', 160, 512, lds3)]
    kernels = [('gm1_kernel', k1.text(), nv1, 100), ('gm2_kernel', k2.text(), max(nv2, nv2b), 100), ('gm3_kernel', k3.text(), nv3, 100)]
    if extra_empty:
        launches = [('nop_kernel', 256, 256, 0)] * extra_empty + launches
        kernels.append(('nop_kernel', '    s_endpgm', 8, 16))
    open(path, 'w').write(wrap('\n'.join(HEADER), launches, kernels))

if __name__ == '__main__':
    build('gated_mix__ssm_conv_s4__mixer_gmlp__prompt.s')
    build('v_e2.s', extra_empty=2)
    build('v_e4.s', extra_empty=4)
```

```python
class KB:
    def __init__(self, name):
        self.name = name
        self.L = []
        self.lab = 0
    def __call__(self, s):
        for line in s.split('\n'):
            line = line.strip()
            if line: self.L.append('    ' + line)
    def label(self, s):
        self.L.append(s + ':')
    def newlabel(self, base='L'):
        self.lab += 1
        return f'{self.name}_{base}{self.lab}'
    def comment(self, s):
        self.L.append('    ; ' + s)
    def text(self):
        return '\n'.join(self.L)
    stamps = False
    def stamp(self, i):
        if self.stamps:
            self(f's_memrealtime s[{80+2*i}:{81+2*i}]')
    def stamp_flush(self, n, ws_lo, off=0x2000000):
        if self.stamps:
            self('s_waitcnt lgkmcnt(0) vmcnt(0)')
            self(f's_memrealtime s[{80+2*n}:{81+2*n}]')
            self('s_waitcnt lgkmcnt(0)')
            self(f's_lshl_b32 s70, s2, 6')
            self(f's_add_u32 s70, s70, {hex(off)}')
            self(f's_add_u32 s72, s{ws_lo}, s70')
            self(f's_addc_u32 s73, s{ws_lo+1}, 0')
            self('v_mov_b32 v160, 0')
            self('s_getreg_b32 s74, hwreg(HW_REG_HW_ID)')
            self('s_getreg_b32 s75, hwreg(HW_REG_XCC_ID)')
            self('v_mov_b32 v161, s74')
            self('global_store_dword v160, v161, s[72:73] offset:56')
            self('v_mov_b32 v161, s75')
            self('global_store_dword v160, v161, s[72:73] offset:60')
            for i in range(n+1):
                self(f'v_mov_b32 v161, s{80+2*i}')
                self(f'global_store_dword v160, v161, s[72:73] offset:{4*i}')
    def srd(self, d, base_lo, base_hi, nbytes, off=None):
        if off is None or off == 0:
            self(f's_mov_b32 s{d}, s{base_lo}')
            self(f's_mov_b32 s{d+1}, s{base_hi}')
        else:
            self(f's_add_u32 s{d}, s{base_lo}, {off if isinstance(off,str) else hex(off)}')
            self(f's_addc_u32 s{d+1}, s{base_hi}, 0')
        self(f's_mov_b32 s{d+2}, {hex(nbytes)}')
        self(f's_mov_b32 s{d+3}, 0x00020000')

def vr(a, n):
    return f'v[{a}:{a+n-1}]' if n > 1 else f'v{a}'
def sr(a, n):
    return f's[{a}:{a+n-1}]' if n > 1 else f's{a}'

def wrap(header_comment, launches, kernels):
    out = []
    for l in header_comment.split('\n'):
        out.append('; ' + l if l else ';')
    for (name, grid, block, lds) in launches:
        out.append(f'; @launch kernel={name} grid=({grid},1,1) block=({block},1,1) lds={lds}')
    out += ['.amdgcn_target "amdgcn-amd-amdhsa--gfx950"', '.text']
    for (name, text, nv, ns) in kernels:
        out += [f'.globl {name}', '.p2align 8', f'.type {name},@function', f'{name}:', text]
    out += ['.section .rodata,"a"']
    for (name, text, nv, ns) in kernels:
        acc = (nv + 3) // 4 * 4
        out += ['.p2align 6', f'.amdhsa_kernel {name}', f'  .amdhsa_next_free_vgpr {nv}', f'  .amdhsa_next_free_sgpr {ns}',
                f'  .amdhsa_accum_offset {acc}', '  .amdhsa_group_segment_fixed_size 0', '  .amdhsa_kernarg_size 144',
                '  .amdhsa_user_sgpr_count 2', '  .amdhsa_user_sgpr_kernarg_segment_ptr 1',
                '  .amdhsa_system_sgpr_workgroup_id_x 1', '.end_amdhsa_kernel']
    return '\n'.join(out) + '\n'
```

```python
from asmlib import *
from layout import *
from gemm3 import rnd_unpack, unpack4
from gemm1 import f2u, LOG2E, allreduce16

def gate_role(k, sIDX, nrows, lwv):
    k(f's_load_dwordx2 s[4:5], s[0:1], {KA["u"]}')
    k(f's_load_dwordx2 s[6:7], s[0:1], {KA["gate_w"]}')
    k(f's_load_dwordx2 s[8:9], s[0:1], {KA["ws"]}')
    sX, sG, sO, sT0, sT1 = 12, 16, 20, 24, 25
    vL, vR, vG, vA, vB, vO = 1, 2, 3, 4, 5, 6
    GW = 8
    GU = 28
    XR = 68
    T = 148
    k(f'v_and_b32 v{vL}, 63, v0')
    k(f'v_and_b32 v{vR}, 15, v{vL}')
    k(f'v_lshrrev_b32 v{vG}, 4, v{vL}')
    k(f'v_lshlrev_b32 v{vB}, 4, v{vR}')
    k(f'v_mul_u32_u24 v{vA}, 1280, v{vG}')
    k(f'v_add_u32 v{vA}, v{vA}, v{vB}')
    k(f's_mul_i32 s{sT0}, s{sIDX}, {16*1280}')
    k('s_waitcnt lgkmcnt(0)')
    k.srd(sX, 4, 5, 16*1280, f's{sT0}')
    k.srd(sG, 6, 7, 1280)
    k(f's_lshl_b32 s{sT0}, s{sIDX}, 7')
    k(f's_add_u32 s{sT0}, s{sT0}, {WS_G}')
    k.srd(sO, 8, 9, 128, f's{sT0}')
    for q in range(5):
        k(f'buffer_load_dwordx4 v[{GW+4*q}:{GW+4*q+3}], v{vB}, s[{sG}:{sG+3}], 0 offen offset:{256*q}')
    for rd in range(4):
        k(f's_movk_i32 s{sT1}, {rd*4*1280}')
        for q in range(5):
            r = XR + 20*rd + 4*q
            k(f'buffer_load_dwordx4 v[{r}:{r+3}], v{vA}, s[{sX}:{sX+3}], s{sT1} offen offset:{256*q}')
    k(f'v_lshlrev_b32 v{vO}, 3, v{vG}')
    k('s_waitcnt vmcnt(20)')
    for q in range(10): unpack4(k, GU + 4*q, GW + 2*q)
    ACC = 8
    for rd in range(4):
        k(f's_waitcnt vmcnt({15 - 5*rd})')
        k(f'v_mov_b32 v{ACC+2*rd}, 0')
        k(f'v_mov_b32 v{ACC+2*rd+1}, 0')
        for q in range(10):
            unpack4(k, T, XR + 20*rd + 2*q)
            for r in (0, 2):
                k(f'v_pk_mul_f32 v[{T+r}:{T+r+1}], v[{T+r}:{T+r+1}], v[{GU+4*q+r}:{GU+4*q+r+1}]')
            rnd_unpack(k, T, T+4)
            for r in (0, 2):
                k(f'v_pk_add_f32 v[{ACC+2*rd}:{ACC+2*rd+1}], v[{ACC+2*rd}:{ACC+2*rd+1}], v[{T+r}:{T+r+1}]')
    S = 16
    for rd in range(4): k(f'v_add_f32 v{S+rd}, v{ACC+2*rd}, v{ACC+2*rd+1}')
    k('s_nop 0')
    allreduce16(k, [S, S+1, S+2, S+3])
    rnd_unpack(k, S, T)
    for r in range(4): k(f'v_mul_f32 v{S+r}, {hex(f2u(-LOG2E))}, v{S+r}')
    for r in range(4): k(f'v_exp_f32 v{S+r}, v{S+r}')
    k('s_nop 0')
    for r in range(4): k(f'v_add_f32 v{S+r}, 1.0, v{S+r}')
    for r in range(4): k(f'v_rcp_f32 v{S+r}, v{S+r}')
    k('s_nop 0')
    rnd_unpack(k, S, T)
    O = 20
    for r in range(4): k(f'v_sub_f32 v{O+r}, 1.0, v{S+r}')
    rnd_unpack(k, O, T)
    k(f'v_cmp_eq_u32 vcc, 0, v{vR}')
    k(f's_and_saveexec_b64 s[26:27], vcc')
    for rd in range(4):
        k(f'v_mov_b32 v{T+2*rd}, v{S+rd}')
        k(f'v_mov_b32 v{T+2*rd+1}, v{O+rd}')
        k(f'buffer_store_dwordx2 v[{T+2*rd}:{T+2*rd+1}], v{vO}, s[{sO}:{sO+3}], 0 offen offset:{32*rd}')
    k('s_endpgm')
```

```python
from asmlib import *
from layout import *
from gemm3 import rnd_unpack, unpack4
import struct
def f2u(x): return struct.unpack('<I', struct.pack('<f', x))[0]

class VM:
    def __init__(self, k): self.k = k; self.ops = []
    def issue(self, tag, ins): self.k(ins); self.ops.append(tag)
    def count_after(self, tags):
        idx = max(i for i, t in enumerate(self.ops) if t in tags)
        return len(self.ops) - 1 - idx
    def wait(self, tags, extra=''):
        n = self.count_after(tags)
        assert n <= 63
        self.k(f's_waitcnt vmcnt({n}){extra}')

LOG2E = 1.4426950408889634
GC1 = -2*0.7978845608028654*LOG2E
GC2 = GC1*0.044715

def gelu_pk(k, a, n, t, sC):
    for p in range(0, n, 2):
        k(f'v_pk_mul_f32 v[{t+p}:{t+p+1}], v[{a+p}:{a+p+1}], v[{a+p}:{a+p+1}]')
    for p in range(0, n, 2):
        k(f'v_pk_fma_f32 v[{t+p}:{t+p+1}], v[{t+p}:{t+p+1}], s[{sC+2}:{sC+3}], v[{sC_v}:{sC_v+1}]')
    for p in range(0, n, 2):
        k(f'v_pk_mul_f32 v[{t+p}:{t+p+1}], v[{t+p}:{t+p+1}], v[{a+p}:{a+p+1}]')
    for p in range(n):
        k(f'v_exp_f32 v{t+p}, v{t+p}')
    for p in range(0, n, 2):
        k(f'v_pk_add_f32 v[{t+p}:{t+p+1}], v[{t+p}:{t+p+1}], 1.0 op_sel_hi:[1,0]')
    for p in range(n):
        k(f'v_rcp_f32 v{t+p}, v{t+p}')
    for p in range(0, n, 2):
        k(f'v_pk_mul_f32 v[{a+p}:{a+p+1}], v[{a+p}:{a+p+1}], v[{t+p}:{t+p+1}]')

def allreduce16(k, regs, op='v_add_f32'):
    for sh in (8, 4, 2, 1):
        if len(regs) < 3: k('s_nop 1')
        for r in regs:
            k(f'{op}_dpp v{r}, v{r}, v{r} row_ror:{sh} row_mask:0xf bank_mask:0xf')

PREF = 2
def gemm1_role(k):
    global sC_v
    WB = 81920; WS_ = 24576
    XCH = 49152
    k.stamp(0)
    k(f's_load_dwordx2 s[4:5], s[0:1], {KA["u"]}')
    k(f's_load_dwordx2 s[6:7], s[0:1], {KA["w_in"]}')
    k(f's_load_dwordx2 s[8:9], s[0:1], {KA["gate_w"]}')
    k(f's_load_dwordx2 s[10:11], s[0:1], {KA["w_sp"]}')
    k(f's_load_dwordx2 s[98:99], s[0:1], {KA["w_out"]}')
    k(f's_load_dwordx4 s[12:15], s[0:1], {KA["dbg"]}')
    sWSp = 14
    sX, sW2, sW1, sZ1, sZ2, sST, sUT, sGW, sGT, sDB = 16, 20, 24, 28, 32, 36, 40, 44, 48, 52
    sRB, sCB, sWV, sT0, sT1, sT2, sMX, sMW, sKGP = 56, 57, 58, 59, 60, 61, 62, 63, 64
    sC = 66
    sM1, sM2, sM3, sEX = 72, 74, 76, 78
    k(f's_and_b32 s{sT0}, s2, 7')
    k(f's_lshr_b32 s{sT1}, s2, 3')
    k(f's_lshl_b32 s{sRB}, s{sT0}, 2')
    k(f's_and_b32 s{sT0}, s{sT1}, 3')
    k(f's_add_u32 s{sRB}, s{sRB}, s{sT0}')
    k(f's_lshr_b32 s{sCB}, s{sT1}, 2')
    vL, vT, vT2, vT3, vT4, vR, vKG = 1, 2, 3, 4, 5, 6, 7
    vDX = 8
    vDWr = 9
    vXA = 12
    vWA = 14
    vXW, vXR = 17, 18
    vZ2O, vZ1O, vSTW, vSTR = 19, 20, 21, 22
    vC1 = 24
    sC_v = vC1
    ACC2 = 28
    ACC1 = 52
    WF = 76
    XF = 124
    TMP = 204
    NV = 248
    k(f'v_lshrrev_b32 v{vT}, 6, v0')
    k(f'v_and_b32 v{vL}, 63, v0')
    k(f'v_readfirstlane_b32 s{sWV}, v{vT}')
    k(f'v_lshrrev_b32 v{vT}, 3, v{vL}')
    k(f'v_and_b32 v{vT2}, 7, v{vL}')
    k(f'v_lshrrev_b32 v{vT3}, 1, v{vT}')
    k(f'v_xor_b32 v{vT3}, v{vT2}, v{vT3}')
    k(f's_and_b32 s{sT0}, s{sWV}, 1')
    k(f's_lshl_b32 s{sT0}, s{sT0}, 2')
    k(f'v_xor_b32 v{vT3}, s{sT0}, v{vT3}')
    k(f'v_lshlrev_b32 v{vT3}, 4, v{vT3}')
    k(f's_lshl_b32 s{sT0}, s{sWV}, 3')
    k(f'v_add_u32 v{vT4}, s{sT0}, v{vT}')
    k(f'v_mul_u32_u24 v{vT4}, 1280, v{vT4}')
    k(f'v_add_u32 v{vDX}, v{vT4}, v{vT3}')
    k(f's_lshl_b32 s{sT0}, s{sWV}, 4')
    for q in range(3):
        k(f'v_add_u32 v{vT}, {64*q}, v{vL}')
        k(f'v_mul_u32_u24 v{vT2}, 0x5556, v{vT}')
        k(f'v_lshrrev_b32 v{vT2}, 18, v{vT2}')
        k(f'v_mul_u32_u24 v{vT3}, 12, v{vT2}')
        k(f'v_sub_u32 v{vT3}, v{vT}, v{vT3}')
        k(f'v_lshrrev_b32 v{vT4}, 2, v{vT2}')
        k(f'v_and_b32 v{vT4}, 2, v{vT4}')
        k(f'v_xor_b32 v{vT3}, v{vT3}, v{vT4}')
        k(f'v_add_u32 v{vT2}, s{sT0}, v{vT2}')
        k(f'v_mul_u32_u24 v{vT2}, 3072, v{vT2}')
        k(f'v_lshl_add_u32 v{vDWr+q}, v{vT3}, 4, v{vT2}')
    k(f's_lshl_b32 s{sMX}, s{sWV}, 10')
    k(f's_mul_i32 s{sMW}, s{sWV}, 3072')
    k(f's_lshr_b32 s{sKGP}, s{sWV}, 2')
    k(f's_min_u32 s{sT0}, s{sWV}, 5')
    k(f's_lshl_b32 s{sT0}, s{sT0}, 3')
    k(f's_add_u32 s{sT0}, s{sT0}, 8')
    k(f's_load_dwordx2 s[66:67], s[0:1], s{sT0}')
    k('s_waitcnt lgkmcnt(0)')
    k(f's_mul_i32 s{sT0}, s{sRB}, {64*1280}')
    k.srd(sX, 4, 5, 64*1280, f's{sT0}')
    k(f's_mul_i32 s{sT0}, s{sCB}, 192')
    k.srd(sW1, 6, 7, 639*3072+192, f's{sT0}')
    k(f's_add_u32 s{sT0}, s{sT0}, 1536')
    k.srd(sW2, 6, 7, 639*3072+192, f's{sT0}')
    vm = VM(k)
    def dmaX(kb):
        k(f's_add_u32 m0, s{sMX}, {kb*8192}')
        k(f's_movk_i32 s{sT0}, {kb*128}')
        vm.issue(f'X{kb}', f'buffer_load_dwordx4 v{vDX}, s[{sX}:{sX+3}], s{sT0} offen lds')
    def wbase(st):
        if st < 8: return WB + (st % 3)*WS_
        return (st - 8)*WS_
    def dmaW(st, q):
        srd = sW2 if st < 5 else sW1
        k(f's_add_u32 m0, s{sMW}, {wbase(st) + q*1024}')
        k(f's_mov_b32 s{sT0}, {(st % 5)*128*3072}')
        vm.issue(f'W{st}', f'buffer_load_dwordx4 v{vDWr+q}, s[{srd}:{srd+3}], s{sT0} offen lds')
    for st in range(3):
        dmaX(2*st); dmaX(2*st+1)
        for q in range(3): dmaW(st, q)
    for kb in range(6, 10): dmaX(kb)
    GX = TMP + 24
    k.srd(sGW, 8, 9, 1280)
    k(f's_lshl_b32 s{sT0}, s{sCB}, 3')
    k(f's_add_u32 s{sT0}, s{sT0}, s{sWV}')
    k(f's_mul_i32 s{sT1}, s{sT0}, 1280')
    k(f'v_lshlrev_b32 v{vT}, 4, v{vL}')
    for r in range(4):
        k(f'v_mov_b32 v{GX+4+r}, 0')
        k(f'v_mov_b32 v{GX+12+r}, 0')
    vm.issue('G', f'buffer_load_dwordx4 v[{GX}:{GX+3}], v{vT}, s[{sX}:{sX+3}], s{sT1} offen')
    vm.issue('G', f'buffer_load_dwordx4 v[{GX+8}:{GX+11}], v{vT}, s[{sGW}:{sGW+3}], 0 offen')
    k('s_mov_b64 exec, 0xffff')
    vm.issue('G', f'buffer_load_dwordx4 v[{GX+4}:{GX+7}], v{vT}, s[{sX}:{sX+3}], s{sT1} offen offset:1024')
    vm.issue('G', f'buffer_load_dwordx4 v[{GX+12}:{GX+15}], v{vT}, s[{sGW}:{sGW+3}], 0 offen offset:1024')
    k('s_mov_b64 exec, -1')
    k(f'v_and_b32 v{vR}, 15, v{vL}')
    k(f'v_lshrrev_b32 v{vKG}, 4, v{vL}')
    k(f'v_lshrrev_b32 v{vT}, 1, v{vR}')
    k(f'v_xor_b32 v{vT}, v{vT}, v{vKG}')
    k(f's_lshl_b32 s{sT0}, s{sKGP}, 2')
    k(f'v_xor_b32 v{vT}, s{sT0}, v{vT}')
    k(f'v_lshlrev_b32 v{vT}, 4, v{vT}')
    k(f'v_lshl_add_u32 v{vT}, v{vR}, 7, v{vT}')
    k(f's_and_b32 s{sT0}, s{sWV}, 1')
    k(f's_lshl_b32 s{sT0}, s{sT0}, 12')
    k(f'v_add_u32 v{vXA}, s{sT0}, v{vT}')
    k(f'v_add_u32 v{vXA+1}, 40960, v{vXA}')
    k(f'v_lshrrev_b32 v{vT}, 2, v{vR}')
    k(f'v_lshl_add_u32 v{vT}, v{vKG}, 3, v{vT}')
    k(f's_lshl_b32 s{sT0}, s{sKGP}, 5')
    k(f'v_add_u32 v{vT}, s{sT0}, v{vT}')
    k(f'v_mul_u32_u24 v{vT}, 192, v{vT}')
    k(f'v_and_b32 v{vT2}, 3, v{vL}')
    k(f'v_lshl_add_u32 v{vT}, v{vT2}, 3, v{vT}')
    k(f'v_and_b32 v{vT2}, 1, v{vKG}')
    k(f'v_lshlrev_b32 v{vT2}, 1, v{vT2}')
    k(f's_lshr_b32 s{sT1}, s{sWV}, 1')
    k(f's_and_b32 s{sT1}, s{sT1}, 1')
    k(f's_mul_i32 s{sT0}, s{sT1}, 6')
    for j in range(3):
        k(f's_add_u32 s{sT2}, s{sT0}, {2*j}')
        k(f'v_xor_b32 v{vT3}, s{sT2}, v{vT2}')
        k(f'v_lshl_add_u32 v{vWA+j}, v{vT3}, 4, v{vT}')
    k(f'v_lshlrev_b32 v{vT}, 4, v{vL}')
    k(f's_add_u32 s{sT0}, s{sMW}, {XCH}')
    k(f'v_add_u32 v{vXW}, s{sT0}, v{vT}')
    k(f's_xor_b32 s{sT0}, s{sWV}, 4')
    k(f's_mul_i32 s{sT0}, s{sT0}, 3072')
    k(f's_add_u32 s{sT0}, s{sT0}, {XCH}')
    k(f'v_add_u32 v{vXR}, s{sT0}, v{vT}')
    k(f's_and_b32 s{sT0}, s{sWV}, 1')
    k(f's_lshl_b32 s{sT0}, s{sT0}, 5')
    k(f's_lshl_b32 s{sT2}, s{sKGP}, 4')
    k(f's_add_u32 s{sT0}, s{sT0}, s{sT2}')
    k(f's_mul_i32 s{sT1}, s{sT1}, 48')
    k(f'v_add_u32 v{vT}, s{sT1}, v{vR}')
    k(f'v_lshlrev_b32 v{vT}, 12, v{vT}')
    k(f'v_lshl_add_u32 v{vT}, v{vKG}, 3, v{vT}')
    k(f's_lshl_b32 s{sT2}, s{sT0}, 1')
    k(f'v_add_u32 v{vZ2O}, s{sT2}, v{vT}')
    k(f'v_add_u32 v{vT}, s{sT0}, v{vR}')
    k(f'v_mul_u32_u24 v{vT}, 1536, v{vT}')
    k(f'v_lshl_add_u32 v{vT}, v{vKG}, 3, v{vT}')
    k(f's_lshl_b32 s{sT2}, s{sT1}, 1')
    k(f'v_add_u32 v{vZ1O}, s{sT2}, v{vT}')
    k(f'v_lshl_add_u32 v{vT}, v{vKG}, 2, v{vR}')
    k(f'v_add_u32 v{vT}, s{sT0}, v{vT}')
    k(f'v_lshlrev_b32 v{vT}, 3, v{vT}')
    k(f's_lshr_b32 s{sT1}, s{sWV}, 1')
    k(f's_and_b32 s{sT1}, s{sT1}, 1')
    k(f's_lshl_b32 s{sT2}, s{sCB}, 1')
    k(f's_add_u32 s{sT1}, s{sT1}, s{sT2}')
    k(f's_lshl_b32 s{sT1}, s{sT1}, 9')
    k(f'v_add_u32 v{vSTW}, s{sT1}, v{vT}')
    k(f'v_lshlrev_b32 v{vT}, 9, v{vR}')
    k(f'v_lshl_add_u32 v{vT}, v{vKG}, 5, v{vT}')
    k(f's_lshl_b32 s{sT2}, s{sT0}, 3')
    k(f'v_add_u32 v{vSTR}, s{sT2}, v{vT}')
    k(f'v_cmp_eq_u32 s[{sM1}:{sM1+1}], 1, v{vR}')
    k(f'v_cmp_eq_u32 s[{sM2}:{sM2+1}], 2, v{vR}')
    k(f'v_cmp_eq_u32 s[{sM3}:{sM3+1}], 3, v{vR}')
    k(f'v_cmp_gt_u32 s[{sEX}:{sEX+1}], 4, v{vR}')
    k(f'v_mov_b32 v{vC1}, {hex(f2u(GC1))}')
    k(f'v_mov_b32 v{vC1+1}, {hex(f2u(GC1))}')
    k(f's_mov_b32 s{sC+2}, {hex(f2u(GC2))}')
    k(f's_mov_b32 s{sC+3}, {hex(f2u(GC2))}')
    k(f's_mul_i32 s{sT0}, s{sRB}, {64*1536}')
    k(f's_mul_i32 s{sT1}, s{sCB}, 192')
    k(f's_add_u32 s{sT0}, s{sT0}, s{sT1}')
    k(f's_add_u32 s{sT0}, s{sT0}, {WS_Z1}')
    k.srd(sZ1, sWSp, sWSp+1, 63*1536+192, f's{sT0}')
    k(f's_mul_i32 s{sT0}, s{sCB}, {96*4096}')
    k(f's_lshl_b32 s{sT1}, s{sRB}, 7')
    k(f's_add_u32 s{sT0}, s{sT0}, s{sT1}')
    k(f's_add_u32 s{sT0}, s{sT0}, {WS_Z2T}')
    k.srd(sZ2, sWSp, sWSp+1, 95*4096+128, f's{sT0}')
    k(f's_lshl_b32 s{sT0}, s{sRB}, 13')
    k(f's_add_u32 s{sT0}, s{sT0}, {WS_ST}')
    k.srd(sST, sWSp, sWSp+1, 8192, f's{sT0}')
    k.srd(sUT, sWSp, sWSp+1, 640*UT_PITCH*2, WS_UT)
    k.srd(sGT, sWSp, sWSp+1, 2048*8, WS_G)
    k.srd(sDB, 12, 13, 256)
    for r in range(48):
        k(f'v_mov_b32 v{ACC2+r}, 0')
    def wreads(st, fs):
        out = []
        base = wbase(st)
        for kk2 in range(2):
            for j in range(3):
                for h in range(2):
                    r = WF + fs*24 + kk2*12 + j*4 + 2*h
                    out.append((r, j, base + kk2*12288 + h*768))
        return out
    vWB = 244
    for j in range(3):
        k(f'v_add_u32 v{vWB+j}, {WB}, v{vWA+j}')
    def wread_ins(st, fs):
        o = []
        for (r, j, off) in wreads(st, fs):
            if off >= WB: o.append(f'ds_read_b64_tr_b16 v[{r}:{r+1}], v{vWB+j} offset:{off-WB}')
            else: o.append(f'ds_read_b64_tr_b16 v[{r}:{r+1}], v{vWA+j} offset:{off}')
        return o
    def xread_ins(st):
        o = []
        for kk2 in range(2):
            kb = 2*st + kk2
            for i in range(2):
                r = XF + kb*8 + i*4
                if kb >= 5: o.append(f'ds_read_b128 v[{r}:{r+3}], v{vXA+1} offset:{(kb-5)*8192 + i*2048}')
                else: o.append(f'ds_read_b128 v[{r}:{r+3}], v{vXA} offset:{kb*8192 + i*2048}')
        return o
    def mf(st, fs):
        o = []
        for kk2 in range(2):
            kb = 2*(st % 5) + kk2
            for j in range(3):
                for i in range(2):
                    w = WF + fs*24 + kk2*12 + j*4
                    x = XF + kb*8 + i*4
                    if st < 5:
                        a = ACC2 + (i*3+j)*4
                        o.append(f'v_mfma_f32_16x16x32_bf16 v[{a}:{a+3}], v[{x}:{x+3}], v[{w}:{w+3}], v[{a}:{a+3}]')
                    else:
                        a = ACC1 + (i*3+j)*4
                        o.append(f'v_mfma_f32_16x16x32_bf16 v[{a}:{a+3}], v[{w}:{w+3}], v[{x}:{x+3}], v[{a}:{a+3}]')
        return o
    def interleave(mfs, rd, per=3, dm=None, dm_at=()):
        rd = list(rd); dm = list(dm or [])
        for n, m in enumerate(mfs):
            k(m)
            for _ in range(per):
                if rd: k(rd.pop(0))
            if dm and n in dm_at:
                dm.pop(0)()
        assert not rd and not dm
    def mix(a, b):
        return b[:2] + a[:6] + b[2:] + a[6:]
    vm.wait({'W0', 'X0', 'X1'})
    k('s_barrier')
    k.stamp(1)
    for r in mix(wread_ins(0, 0), xread_ins(0)): k(r)
    for st in range(5):
        nx = st + 1
        need = {f'W{nx}'} | ({f'X{2*nx}', f'X{2*nx+1}'} if nx < 5 else set())
        vm.wait(need, ' lgkmcnt(0)')
        k('s_barrier')
        rd = mix(wread_ins(nx, nx % 2), xread_ins(nx)) if nx < 5 else wread_ins(nx, nx % 2)
        dm = [lambda q=q, s=st: dmaW(s+3, q) for q in range(3)]
        at = (6, 7, 8)
        if st == 4:
            dm += [lambda q=q, s=s: dmaW(s, q) for s in (8, 9) for q in range(3)]
            at = (3, 4, 5, 6, 7, 8, 9, 10, 11)
        interleave(mf(st, st % 2), rd, 3, dm, at)
        if st == 3:
            side_jobs(k, vm, locals())
    k.stamp(2)
    k('s_nop 7')
    lab_hi = k.newlabel('x1hi'); lab_j = k.newlabel('x1j')
    def exch_write(ACC):
        lab_hi = k.newlabel('xhi'); lab_j = k.newlabel('xj')
        k(f's_cmp_lg_u32 s{sKGP}, 0')
        k(f's_cbranch_scc1 {lab_hi}')
        for j in range(3):
            k(f'ds_write_b128 v{vXW}, v[{ACC+12+4*j}:{ACC+15+4*j}] offset:{j*1024}')
        k(f's_branch {lab_j}')
        k.label(lab_hi)
        for j in range(3):
            k(f'ds_write_b128 v{vXW}, v[{ACC+4*j}:{ACC+3+4*j}] offset:{j*1024}')
        k('s_nop 1')
        for r in range(0, 12, 2):
            k(f'v_pk_add_f32 v[{ACC+r}:{ACC+r+1}], v[{ACC+12+r}:{ACC+13+r}], 0 op_sel_hi:[1,0]')
        k.label(lab_j)
    exch_write(ACC2)
    vm.wait({'W6'}, ' lgkmcnt(0)')
    k('s_barrier')
    for j in range(3):
        k(f'ds_read_b128 v[{TMP+4*j}:{TMP+3+4*j}], v{vXR} offset:{j*1024}')
    rd = wread_ins(6, 0)
    interleave(mf(5, 1), rd, 3)
    k('s_waitcnt lgkmcnt(12)')
    Z = ACC2
    for r in range(0, 12, 2):
        k(f'v_pk_add_f32 v[{Z+r}:{Z+r+1}], v[{Z+r}:{Z+r+1}], v[{TMP+r}:{TMP+r+1}]')
    for j in range(3): rnd_unpack(k, Z+4*j, TMP+2*j)
    gelu_pk(k, Z, 12, TMP, sC)
    for j in range(3): rnd_unpack(k, Z+4*j, TMP+2*j)
    S = TMP; Dv = TMP + 4; Q = TMP + 16
    for r in (0, 2):
        k(f'v_pk_add_f32 v[{S+r}:{S+r+1}], v[{Z+r}:{Z+r+1}], v[{Z+4+r}:{Z+5+r}]')
    for r in (0, 2):
        k(f'v_pk_add_f32 v[{S+r}:{S+r+1}], v[{S+r}:{S+r+1}], v[{Z+8+r}:{Z+9+r}]')
    k('s_nop 0')
    allreduce16(k, [S, S+1, S+2, S+3])
    k(f's_mov_b32 s{sT0}, {hex(f2u(1.0/48))}')
    for r in range(4):
        k(f'v_mul_f32 v{S+r}, s{sT0}, v{S+r}')
    for j in range(3):
        for r in (0, 2):
            k(f'v_pk_add_f32 v[{Dv+4*j+r}:{Dv+4*j+r+1}], v[{Z+4*j+r}:{Z+4*j+r+1}], v[{S+r}:{S+r+1}] neg_lo:[0,1] neg_hi:[0,1]')
    for r in (0, 2):
        k(f'v_pk_mul_f32 v[{Q+r}:{Q+r+1}], v[{Dv+r}:{Dv+r+1}], v[{Dv+r}:{Dv+r+1}]')
    for j in (1, 2):
        for r in (0, 2):
            k(f'v_pk_fma_f32 v[{Q+r}:{Q+r+1}], v[{Dv+4*j+r}:{Dv+4*j+r+1}], v[{Dv+4*j+r}:{Dv+4*j+r+1}], v[{Q+r}:{Q+r+1}]')
    k('s_nop 0')
    allreduce16(k, [Q, Q+1, Q+2, Q+3])
    P = TMP + 20
    k(f'v_cndmask_b32 v{P}, v{S}, v{S+1}, s[{sM1}:{sM1+1}]')
    k(f'v_cndmask_b32 v{P+1}, v{Q}, v{Q+1}, s[{sM1}:{sM1+1}]')
    k(f'v_cndmask_b32 v{P}, v{P}, v{S+2}, s[{sM2}:{sM2+1}]')
    k(f'v_cndmask_b32 v{P+1}, v{P+1}, v{Q+2}, s[{sM2}:{sM2+1}]')
    k(f'v_cndmask_b32 v{P}, v{P}, v{S+3}, s[{sM3}:{sM3+1}]')
    k(f'v_cndmask_b32 v{P+1}, v{P+1}, v{Q+3}, s[{sM3}:{sM3+1}]')
    k(f's_mov_b64 exec, s[{sEX}:{sEX+1}]')
    vm.issue('ST', f'buffer_store_dwordx2 v[{P}:{P+1}], v{vSTW}, s[{sST}:{sST+3}], 0 offen sc1')
    k('s_mov_b64 exec, -1')
    def prefetch():
        PR = TMP + 28
        k(f's_lshl_b32 s{sT0}, s2, 15')
        k(f's_lshl_b32 s{sT1}, s{sWV}, 12')
        k(f's_add_u32 s{sT0}, s{sT0}, s{sT1}')
        k.srd(sW2, 10, 11, 4096, f's{sT0}')
        k(f'v_lshlrev_b32 v{vT}, 4, v{vL}')
        for q in range(4):
            vm.issue('PF', f'buffer_load_dwordx4 v[{PR}:{PR+3}], v{vT}, s[{sW2}:{sW2+3}], 0 offen offset:{1024*q}')
        k(f's_mul_i32 s{sT0}, s2, 3840')
        k(f's_mul_i32 s{sT1}, s{sWV}, 480')
        k(f's_add_u32 s{sT0}, s{sT0}, s{sT1}')
        k.srd(sW1, 98, 99, 480, f's{sT0}')
        vm.issue('PF', f'buffer_load_dwordx4 v[{PR}:{PR+3}], v{vT}, s[{sW1}:{sW1+3}], 0 offen')
        k(f's_mul_i32 s{sT0}, s2, 960')
        k.srd(sX, 66, 67, 960, f's{sT0}')
        vm.issue('PF', f'buffer_load_dwordx4 v[{PR}:{PR+3}], v{vT}, s[{sX}:{sX+3}], 0 offen')
    if PREF == 2:
        prefetch()
    k.stamp(3)
    vm.wait({'W7'}, ' lgkmcnt(0)')
    k('s_barrier')
    interleave(mf(6, 0), wread_ins(7, 1), 3)
    vm.wait({'W9', 'ST'}, ' lgkmcnt(0)')
    k('s_barrier')
    k(f'v_mov_b32 v{TMP+24}, 1')
    k(f's_lshl_b32 s{sT0}, s{sRB}, 3')
    k(f'v_mov_b32 v{TMP+25}, s{sT0}')
    k(f's_add_u32 s{sT0}, s{sT0}, s{sCB}')
    k(f'v_mov_b32 v{TMP+26}, s{sT0}')
    lsig = k.newlabel('sig')
    k(f's_cmp_lg_u32 s{sWV}, 0')
    k(f's_cbranch_scc1 {lsig}')
    k('s_mov_b64 exec, 1')
    k(f'buffer_store_byte v{TMP+24}, v{TMP+26}, s[{sDB}:{sDB+3}], 0 offen sc1')
    k('s_mov_b64 exec, -1')
    k.label(lsig)
    interleave(mf(7, 1), wread_ins(8, 0), 3)
    k('s_waitcnt lgkmcnt(0)')
    interleave(mf(8, 0), wread_ins(9, 1), 3)
    k('s_waitcnt lgkmcnt(0)')
    interleave(mf(9, 1), [], 3)
    k.stamp(4)
    k('s_nop 7')
    exch_write(ACC1)
    k('s_waitcnt lgkmcnt(0)')
    k('s_barrier')
    for j in range(3):
        k(f'ds_read_b128 v[{TMP+4*j}:{TMP+3+4*j}], v{vXR} offset:{j*1024}')
    k('s_waitcnt lgkmcnt(0)')
    Y = ACC1
    for r in range(0, 12, 2):
        k(f'v_pk_add_f32 v[{Y+r}:{Y+r+1}], v[{Y+r}:{Y+r+1}], v[{TMP+r}:{TMP+r+1}]')
    for j in range(3): rnd_unpack(k, Y+4*j, TMP+2*j)
    gelu_pk(k, Y, 12, TMP, sC)
    for j in range(3):
        k(f'v_cvt_pk_bf16_f32 v{TMP+2*j}, v{Y+4*j}, v{Y+4*j+1}')
        k(f'v_cvt_pk_bf16_f32 v{TMP+2*j+1}, v{Y+4*j+2}, v{Y+4*j+3}')
        vm.issue('Z1', f'buffer_store_dwordx2 v[{TMP+2*j}:{TMP+2*j+1}], v{vZ1O}, s[{sZ1}:{sZ1+3}], 0 offen offset:{32*j}')
    k.stamp(5)
    lp = k.newlabel('poll'); lpd = k.newlabel('polld')
    k(f's_cmp_lg_u32 s{sWV}, 0')
    k(f's_cbranch_scc1 {lpd}')
    k.label(lp)
    k(f'buffer_load_dwordx2 v[{TMP+26}:{TMP+27}], v{TMP+25}, s[{sDB}:{sDB+3}], 0 offen sc1')
    k('s_waitcnt vmcnt(0)')
    k(f'v_and_b32 v{TMP+26}, v{TMP+26}, v{TMP+27}')
    k('s_nop 0')
    k(f'v_readfirstlane_b32 s{sT0}, v{TMP+26}')
    k(f's_cmp_eq_u32 s{sT0}, 0x01010101')
    k(f's_cbranch_scc1 {lpd}')
    k('s_sleep 1')
    k(f's_branch {lp}')
    k.label(lpd)
    k('s_barrier')
    k.stamp(6)
    A = TMP + 8
    k(f'buffer_load_dwordx4 v[{A}:{A+3}], v{vSTR}, s[{sST}:{sST+3}], 0 offen sc1')
    k(f'buffer_load_dwordx4 v[{A+4}:{A+7}], v{vSTR}, s[{sST}:{sST+3}], 0 offen offset:16 sc1')
    if PREF == 1:
        prefetch()
        k('s_waitcnt vmcnt(5)')
    else:
        k('s_waitcnt vmcnt(0)')
    Mn = TMP + 16; Vr = TMP + 20
    for r in range(4): k(f'v_mov_b32 v{Mn+r}, v{A+2*r}')
    k('s_nop 0')
    allreduce16(k, [Mn, Mn+1, Mn+2, Mn+3])
    k(f's_mov_b32 s{sT0}, {hex(f2u(48.0))}')
    for r in range(4):
        k(f'v_mul_f32 v{Mn+r}, 0x3d800000, v{Mn+r}')
    for r in range(4):
        k(f'v_sub_f32 v{A+2*r}, v{A+2*r}, v{Mn+r}')
    for r in range(4):
        k(f'v_mul_f32 v{A+2*r}, v{A+2*r}, v{A+2*r}')
    for r in range(4):
        k(f'v_fma_f32 v{Vr+r}, v{A+2*r}, s{sT0}, v{A+2*r+1}')
    k('s_nop 0')
    allreduce16(k, [Vr, Vr+1, Vr+2, Vr+3])
    k(f's_mov_b32 s{sT0}, {hex(f2u(1.0/768))}')
    for r in range(4):
        k(f'v_mul_f32 v{Vr+r}, s{sT0}, v{Vr+r}')
    rnd_unpack(k, Mn, TMP)
    rnd_unpack(k, Vr, TMP+2)
    for r in range(4):
        k(f'v_add_f32 v{Vr+r}, {hex(f2u(1e-5))}, v{Vr+r}')
    rnd_unpack(k, Vr, TMP)
    for r in range(4):
        k(f'v_sqrt_f32 v{Vr+r}, v{Vr+r}')
    k('s_nop 0')
    rnd_unpack(k, Vr, TMP)
    for r in range(4):
        k(f'v_rcp_f32 v{Vr+r}, v{Vr+r}')
    for j in range(3):
        for r in (0, 2):
            k(f'v_pk_add_f32 v[{Z+4*j+r}:{Z+4*j+r+1}], v[{Z+4*j+r}:{Z+4*j+r+1}], v[{Mn+r}:{Mn+r+1}] neg_lo:[0,1] neg_hi:[0,1]')
    for j in range(3): rnd_unpack(k, Z+4*j, TMP+2*j)
    for j in range(3):
        for r in (0, 2):
            k(f'v_pk_mul_f32 v[{Z+4*j+r}:{Z+4*j+r+1}], v[{Z+4*j+r}:{Z+4*j+r+1}], v[{Vr+r}:{Vr+r+1}]')
    for j in range(3):
        k(f'v_cvt_pk_bf16_f32 v{TMP+2*j}, v{Z+4*j}, v{Z+4*j+1}')
        k(f'v_cvt_pk_bf16_f32 v{TMP+2*j+1}, v{Z+4*j+2}, v{Z+4*j+3}')
        k(f's_mov_b32 s{sT0}, {j*16*4096}')
        k(f'buffer_store_dwordx2 v[{TMP+2*j}:{TMP+2*j+1}], v{vZ2O}, s[{sZ2}:{sZ2+3}], s{sT0} offen')
    k.stamp(7)
    k.stamp_flush(8, sWSp)
    return WB + 3*WS_, NV

def side_jobs(k, vm, L):
    g = lambda n: L[n]
    sWV, sCB, sRB, sT0, sT1, sT2 = g('sWV'), g('sCB'), g('sRB'), g('sT0'), g('sT1'), g('sT2')
    vL, vR, vKG, TMP = g('vL'), g('vR'), g('vKG'), g('TMP')
    sUT, sGW, sGT, sX = g('sUT'), g('sGW'), g('sGT'), g('sX')
    lg = k.newlabel('gate'); le = k.newlabel('sjend')
    k(f's_cmp_ge_u32 s{sWV}, 5')
    k(f's_cbranch_scc1 {lg}')
    k(f's_mul_i32 s{sT0}, s{sCB}, 5')
    k(f's_add_u32 s{sT0}, s{sT0}, s{sWV}')
    a, b, c, d = TMP, TMP+1, TMP+2, TMP+3
    k(f'v_lshrrev_b32 v{a}, 2, v{vR}')
    k(f'v_lshl_add_u32 v{b}, v{vKG}, 3, v{a}')
    k(f'v_lshrrev_b32 v{c}, 1, v{b}')
    k(f'v_and_b32 v{c}, 7, v{c}')
    k(f'v_and_b32 v{d}, 3, v{vL}')
    k(f'v_lshrrev_b32 v{a}, 1, v{d}')
    k(f's_and_b32 s{sT1}, s{sT0}, 3')
    k(f's_lshl_b32 s{sT1}, s{sT1}, 1')
    k(f'v_or_b32 v{a}, s{sT1}, v{a}')
    k(f'v_xor_b32 v{a}, v{a}, v{c}')
    k(f'v_lshlrev_b32 v{a}, 4, v{a}')
    k(f'v_lshl_add_u32 v{a}, v{b}, 7, v{a}')
    k(f'v_and_b32 v{d}, 1, v{d}')
    k(f'v_lshl_add_u32 v{a}, v{d}, 3, v{a}')
    k(f's_lshr_b32 s{sT1}, s{sT0}, 2')
    k(f's_lshl_b32 s{sT1}, s{sT1}, 13')
    k(f'v_add_u32 v{a}, s{sT1}, v{a}')
    k(f'v_xor_b32 v{c}, 32, v{a}')
    R = TMP + 4
    for half in range(2):
        k(f'ds_read_b64_tr_b16 v[{R+4*half}:{R+4*half+1}], v{a} offset:{half*4096}')
        k(f'ds_read_b64_tr_b16 v[{R+4*half+2}:{R+4*half+3}], v{c} offset:{half*4096+512}')
    k(f's_lshl_b32 s{sT0}, s{sT0}, 4')
    k(f'v_add_u32 v{b}, s{sT0}, v{vR}')
    k(f'v_mul_u32_u24 v{b}, {UT_PITCH*2}, v{b}')
    k(f'v_lshl_add_u32 v{d}, v{vKG}, 4, v{b}')
    k(f's_lshl_b32 s{sT1}, s{sRB}, 7')
    k(f's_add_u32 s{sT1}, s{sT1}, {UT_PAD*2}')
    for r in range(4): k(f'v_mov_b32 v{R+8+r}, 0')
    k('s_waitcnt lgkmcnt(0)')
    k(f'buffer_store_dwordx4 v[{R}:{R+3}], v{d}, s[{sUT}:{sUT+3}], s{sT1} offen')
    k(f'buffer_store_dwordx4 v[{R+4}:{R+7}], v{d}, s[{sUT}:{sUT+3}], s{sT1} offen offset:64')
    k(f's_cmp_eq_u32 s{sRB}, 0')
    k(f's_cselect_b32 s{sT1}, 0, 0x7f000000')
    k(f'buffer_store_dwordx4 v[{R+8}:{R+11}], v{d}, s[{sUT}:{sUT+3}], s{sT1} offen')
    k.label(lg)
    GX = g('GX')
    vm.wait({'G'})
    ACCr = TMP + 3
    k(f'v_mov_b32 v{ACCr}, 0')
    for q in range(4):
        unpack4(k, TMP+12, GX+2*q)
        unpack4(k, TMP+16, GX+8+2*q)
        for r in (0, 2):
            k(f'v_pk_mul_f32 v[{TMP+12+r}:{TMP+13+r}], v[{TMP+12+r}:{TMP+13+r}], v[{TMP+16+r}:{TMP+17+r}]')
        rnd_unpack(k, TMP+12, TMP+20)
        k(f'v_pk_add_f32 v[{TMP+12}:{TMP+13}], v[{TMP+12}:{TMP+13}], v[{TMP+14}:{TMP+15}]')
        k(f'v_add_f32 v{ACCr}, v{TMP+12}, v{ACCr}')
        k(f'v_add_f32 v{ACCr}, v{TMP+13}, v{ACCr}')
    allreduce16(k, [ACCr])
    k('s_nop 1')
    k(f'v_add_f32_dpp v{ACCr}, v{ACCr}, v{ACCr} row_bcast:15 row_mask:0xa bank_mask:0xf')
    k('s_nop 1')
    k(f'v_add_f32_dpp v{ACCr}, v{ACCr}, v{ACCr} row_bcast:31 row_mask:0xc bank_mask:0xf')
    X = TMP + 4
    k(f'v_cvt_pk_bf16_f32 v{ACCr}, v{ACCr}, v{ACCr}')
    k(f'v_lshlrev_b32 v{ACCr}, 16, v{ACCr}')
    k(f'v_mul_f32 v{X}, {hex(f2u(-LOG2E))}, v{ACCr}')
    k(f'v_exp_f32 v{X}, v{X}')
    k('s_nop 0')
    k(f'v_add_f32 v{X}, 1.0, v{X}')
    k(f'v_rcp_f32 v{X}, v{X}')
    k('s_nop 0')
    k(f'v_cvt_pk_bf16_f32 v{X}, v{X}, v{X}')
    k(f'v_lshlrev_b32 v{X}, 16, v{X}')
    k(f'v_sub_f32 v{X+1}, 1.0, v{X}')
    k(f'v_cvt_pk_bf16_f32 v{X+1}, v{X+1}, v{X+1}')
    k(f'v_lshlrev_b32 v{X+1}, 16, v{X+1}')
    k(f's_lshl_b32 s{sT1}, s{sRB}, 6')
    k(f's_lshl_b32 s{sT0}, s{sCB}, 3')
    k(f's_add_u32 s{sT1}, s{sT1}, s{sT0}')
    k(f's_add_u32 s{sT1}, s{sT1}, s{sWV}')
    k(f's_lshl_b32 s{sT1}, s{sT1}, 3')
    k(f'v_mov_b32 v{TMP}, s{sT1}')
    k('s_mov_b32 exec_lo, 0')
    k('s_mov_b32 exec_hi, 0x80000000')
    vm.issue('GS', f'buffer_store_dwordx2 v[{X}:{X+1}], v{TMP}, s[{sGT}:{sGT+3}], 0 offen')
    k('s_mov_b64 exec, -1')
    k.label(le)

if __name__ == '__main__':
    import sys
    k = KB('k1')
    k.stamps = len(sys.argv) > 1
    k('s_cmp_ge_u32 s2, 256')
    k('s_cbranch_scc1 k1_end')
    lds, nv = gemm1_role(k)
    k.label('k1_end')
    k('s_endpgm')
    open('g1.s', 'w').write(wrap('gemm1 test', [('k1_kernel', 256, 512, lds)], [('k1_kernel', k.text(), 256 if k.stamps else nv, 100)]))
```

```python
from asmlib import *
from layout import *
from gemm3 import rnd_unpack, unpack4
from gemm1 import f2u, LOG2E, GC1, GC2, allreduce16

def gelu_pk(k, a, n, t, sC2, vC1):
    for p in range(0, n, 2):
        k(f'v_pk_mul_f32 v[{t+p}:{t+p+1}], v[{a+p}:{a+p+1}], v[{a+p}:{a+p+1}]')
    for p in range(0, n, 2):
        k(f'v_pk_fma_f32 v[{t+p}:{t+p+1}], v[{t+p}:{t+p+1}], s[{sC2}:{sC2+1}], v[{vC1}:{vC1+1}]')
    for p in range(0, n, 2):
        k(f'v_pk_mul_f32 v[{t+p}:{t+p+1}], v[{t+p}:{t+p+1}], v[{a+p}:{a+p+1}]')
    for p in range(n):
        k(f'v_exp_f32 v{t+p}, v{t+p}')
    for p in range(0, n, 2):
        k(f'v_pk_add_f32 v[{t+p}:{t+p+1}], v[{t+p}:{t+p+1}], 1.0 op_sel_hi:[1,0]')
    for p in range(n):
        k(f'v_rcp_f32 v{t+p}, v{t+p}')
    for p in range(0, n, 2):
        k(f'v_pk_mul_f32 v[{a+p}:{a+p+1}], v[{a+p}:{a+p+1}], v[{t+p}:{t+p+1}]')

FLAGSTEP = 14
ROT = 0
FRONT = 0
RPM = 2
NSIDE = 14
def gemm1b_role(k, NS=5):
    STG = 24576
    XCH = NS*STG
    NKS = 20
    k.stamp(0)
    k(f's_load_dwordx2 s[4:5], s[0:1], {KA["u"]}')
    k(f's_load_dwordx2 s[6:7], s[0:1], {KA["w_in"]}')
    k(f's_load_dwordx4 s[12:15], s[0:1], {KA["dbg"]}')
    sWSp = 14
    sX, sW, sZ1, sZ2, sST, sUT, sDB = 16, 20, 24, 28, 32, 36, 40
    sRB, sCB, sWV, sT0, sT1, sT2, sKGP, sKX, sKW, sMX, sMW, sJ, sSTG = range(44, 57)
    sC2 = 58
    sM1, sM2, sM3, sEX, sL12 = 60, 62, 64, 66, 68
    vL, vT, vT2, vT3, vT4, vR, vKG = 1, 2, 3, 4, 5, 6, 7
    k(f'v_lshrrev_b32 v{vT}, 6, v0')
    k(f'v_and_b32 v{vL}, 63, v0')
    k(f'v_readfirstlane_b32 s{sWV}, v{vT}')
    k(f's_and_b32 s{sT0}, s2, 7')
    k(f's_lshr_b32 s{sT1}, s2, 3')
    k(f's_lshl_b32 s{sRB}, s{sT0}, 2')
    k(f's_and_b32 s{sT0}, s{sT1}, 3')
    k(f's_add_u32 s{sRB}, s{sRB}, s{sT0}')
    k(f's_lshr_b32 s{sCB}, s{sT1}, 2')
    lcons = k.newlabel('cons')
    k(f's_cmp_lt_u32 s{sWV}, 8')
    k(f's_cbranch_scc1 {lcons}')
    vDX, vDW = 8, 12
    vUA, vUS = 20, 44
    UR = 24
    ZR = 40
    vA4 = 48
    k(f's_sub_u32 s{sWV}, s{sWV}, 8')
    k(f'v_lshrrev_b32 v{vT}, 3, v{vL}')
    k(f'v_and_b32 v{vT2}, 7, v{vL}')
    k(f'v_lshrrev_b32 v{vT3}, 1, v{vT}')
    k(f'v_xor_b32 v{vT3}, v{vT2}, v{vT3}')
    k(f'v_lshlrev_b32 v{vT3}, 4, v{vT3}')
    k(f's_lshl_b32 s{sT0}, s{sWV}, 4')
    k(f'v_add_u32 v{vT4}, s{sT0}, v{vT}')
    k(f'v_mul_u32_u24 v{vT4}, 1280, v{vT4}')
    k(f'v_add_u32 v{vT4}, 4096, v{vT4}')
    k(f'v_add_u32 v{vDX}, v{vT4}, v{vT3}')
    k(f'v_xor_b32 v{vT3}, 64, v{vT3}')
    k(f'v_add_u32 v{vDX+1}, v{vT4}, v{vT3}')
    k(f'v_add_u32 v{vDX+1}, {8*1280 - 1024}, v{vDX+1}')
    k(f'v_lshrrev_b32 v{vT}, 4, v{vL}')
    k(f'v_and_b32 v{vT2}, 15, v{vL}')
    k(f'v_lshlrev_b32 v{vT3}, 1, v{vT}')
    k(f'v_xor_b32 v{vT3}, v{vT2}, v{vT3}')
    k(f'v_lshlrev_b32 v{vT3}, 4, v{vT3}')
    k(f's_lshl_b32 s{sT0}, s{sWV}, 4')
    k(f'v_add_u32 v{vT4}, s{sT0}, v{vT}')
    k(f'v_mul_u32_u24 v{vT4}, 3072, v{vT4}')
    k(f'v_add_u32 v{vT}, v{vT4}, v{vT3}')
    k(f'v_xor_b32 v{vT3}, 128, v{vT3}')
    k(f'v_add_u32 v{vT2}, v{vT4}, v{vT3}')
    for i in range(4):
        k(f'v_add_u32 v{vDW+i}, {i*4*3072 + 4096 - 1024*i}, v{vT2 if (i >> 1) & 1 else vT}')
    k(f's_lshl_b32 s{sMX}, s{sWV}, 11')
    k(f's_lshl_b32 s{sMW}, s{sWV}, 12')
    k(f's_add_u32 s{sMW}, s{sMW}, 8192')
    k('s_waitcnt lgkmcnt(0)')
    k(f's_mul_i32 s{sT0}, s{sRB}, {64*1280}')
    k(f's_sub_u32 s4, s4, 4096')
    k(f's_subb_u32 s5, s5, 0')
    k.srd(sX, 4, 5, 64*1280 + 4096, f's{sT0}')
    k(f's_lshl_b32 s{sT0}, s{sCB}, 8')
    k(f's_sub_u32 s6, s6, 4096')
    k(f's_subb_u32 s7, s7, 0')
    k.srd(sW, 6, 7, 639*3072 + 1536 + 256 + 4096, f's{sT0}')
    def group(g):
        st = (g % NS)*STG
        kb = g % 10
        k(f's_add_u32 m0, s{sMX}, {st}')
        k(f's_movk_i32 s{sKX}, {kb*128}')
        k(f'buffer_load_dwordx4 v{vDX}, s[{sX}:{sX+3}], s{sKX} offen lds')
        k(f's_mov_b32 s{sKW}, {kb*64*3072 + (1536 if g < 10 else 0)}')
        k(f'buffer_load_dwordx4 v{vDX+1}, s[{sX}:{sX+3}], s{sKX} offen offset:1024 lds')
        k(f's_add_u32 m0, s{sMW}, {st}')
        k('s_nop 0')
        for i in range(4):
            k(f'buffer_load_dwordx4 v{vDW+i}, s[{sW}:{sW+3}], s{sKW} offen offset:{1024*i} lds')
    group(0); group(1)
    k(f'v_and_b32 v{vR}, 15, v{vL}')
    k(f'v_lshrrev_b32 v{vKG}, 4, v{vL}')
    k(f'v_lshrrev_b32 v{vT}, 2, v{vR}')
    k(f'v_and_b32 v{vT4}, 1, v{vKG}')
    k(f'v_lshl_add_u32 v{vT2}, v{vT4}, 3, v{vT}')
    k(f'v_lshrrev_b32 v{vT3}, 1, v{vT2}')
    k(f'v_and_b32 v{vT4}, 3, v{vL}')
    k(f'v_lshrrev_b32 v{vT}, 1, v{vT4}')
    k(f'v_and_b32 v{vUS}, 2, v{vKG}')
    k(f'v_or_b32 v{vT}, v{vT}, v{vUS}')
    k(f'v_xor_b32 v{vT}, v{vT}, v{vT3}')
    k(f'v_lshlrev_b32 v{vT}, 4, v{vT}')
    k(f'v_lshl_add_u32 v{vT}, v{vT2}, 7, v{vT}')
    k(f'v_and_b32 v{vT4}, 1, v{vT4}')
    k(f'v_lshl_add_u32 v{vUA}, v{vT4}, 3, v{vT}')
    k(f'v_add_u32 v{vUA}, s{sMX}, v{vUA}')
    k(f'v_lshl_add_u32 v{vT}, v{vUS}, 3, v{vR}')
    k(f'v_mul_u32_u24 v{vT}, {UT_PITCH*2}, v{vT}')
    k(f'v_and_b32 v{vT4}, 1, v{vKG}')
    k(f'v_lshl_add_u32 v{vUS}, v{vT4}, 4, v{vT}')
    k(f'v_add_u32 v{vUS+1}, {32*UT_PITCH*2}, v{vUS}')
    for r in range(4): k(f'v_mov_b32 v{ZR+r}, 0')
    k.srd(sUT, sWSp, sWSp+1, 640*UT_PITCH*2, WS_UT)
    k.srd(sDB, 12, 13, 256)
    k('s_waitcnt vmcnt(6)')
    k('s_barrier')
    for g in range(2, NS): group(g)
    lut = k.newlabel('ut')
    sRET = 70
    for j in range(NKS-1):
        lastg = min(j - 1 + NS, NKS - 1)
        k(f's_waitcnt vmcnt({6*max(0, lastg-(j+1))})')
        k('s_barrier')
        if j < 10:
            lsk = k.newlabel('lsk')
            k(f's_cmp_lg_u32 s{sCB}, {j if j < 6 else j - 6}')
            k(f's_cbranch_scc1 {lsk}')
            k(f's_mov_b32 s{sSTG}, {(j % NS)*STG}')
            k(f's_mov_b32 s{sJ}, {j*64*UT_PITCH*2}')
            k(f's_call_b64 s[{sRET}:{sRET+1}], {lut}')
            k.label(lsk)
        if j == FLAGSTEP:
            lnf = k.newlabel('lnf')
            k(f's_cmp_lg_u32 s{sWV}, 0')
            k(f's_cbranch_scc1 {lnf}')
            k(f'v_mov_b32 v{vT}, 1')
            k(f's_lshl_b32 s{sT0}, s{sRB}, 3')
            k(f's_add_u32 s{sT0}, s{sT0}, s{sCB}')
            k(f'v_mov_b32 v{vT2}, s{sT0}')
            k('s_mov_b64 exec, 1')
            k(f'buffer_store_byte v{vT}, v{vT2}, s[{sDB}:{sDB+3}], 0 offen sc1')
            k('s_mov_b64 exec, -1')
            k.label(lnf)
        if j + NS < NKS: group(j + NS)
    lend = k.newlabel('lend')
    k(f's_cmp_lg_u32 s{sWV}, 0')
    k(f's_cbranch_scc1 {lend}')
    k(f's_lshl_b32 s{sT0}, s{sRB}, 3')
    k(f'v_mov_b32 v{vT3}, s{sT0}')
    lp = k.newlabel('poll'); lpd = k.newlabel('polld')
    k.label(lp)
    k(f'buffer_load_dwordx2 v[{vT}:{vT+1}], v{vT3}, s[{sDB}:{sDB+3}], 0 offen sc1')
    k('s_waitcnt vmcnt(0)')
    k(f'v_or_b32 v{vT+1}, 0x01010000, v{vT+1}')
    k(f'v_and_b32 v{vT}, v{vT}, v{vT+1}')
    k('s_nop 0')
    k(f'v_readfirstlane_b32 s{sT0}, v{vT}')
    k(f's_cmp_eq_u32 s{sT0}, 0x01010101')
    k(f's_cbranch_scc1 {lpd}')
    k('s_sleep 1')
    k(f's_branch {lp}')
    k.label(lpd)
    k('s_barrier')
    k.label(lend)
    k('s_endpgm')
    k.label(lut)
    k(f'v_add_u32 v{vA4}, s{sSTG}, v{vUA}')
    k(f'v_xor_b32 v{vA4+1}, 32, v{vA4}')
    k(f'v_xor_b32 v{vA4+2}, 64, v{vA4}')
    k(f'v_xor_b32 v{vA4+3}, 96, v{vA4}')
    for i in range(2):
        r = UR + 4*i
        k(f'ds_read_b64_tr_b16 v[{r}:{r+1}], v{vA4+2*i}')
        k(f'ds_read_b64_tr_b16 v[{r+2}:{r+3}], v{vA4+2*i+1} offset:512')
    k(f's_lshl_b32 s{sT2}, s{sWV}, 5')
    k(f's_add_u32 s{sT0}, s{sJ}, s{sT2}')
    k(f's_lshl_b32 s{sT1}, s{sRB}, 7')
    k(f's_add_u32 s{sT1}, s{sT1}, {UT_PAD*2}')
    k(f's_add_u32 s{sT1}, s{sT1}, s{sT0}')
    k(f's_lshr_b32 s{sT2}, s{sWV}, 1')
    k(f's_or_b32 s{sT2}, s{sRB}, s{sT2}')
    k(f's_cmp_eq_u32 s{sT2}, 0')
    k(f's_cselect_b32 s{sT0}, s{sT0}, 0x7f000000')
    k('s_waitcnt lgkmcnt(0)')
    for i in range(2):
        r = UR + 4*i
        k(f'buffer_store_dwordx4 v[{r}:{r+3}], v{vUS+i}, s[{sUT}:{sUT+3}], s{sT1} offen')
        k(f'buffer_store_dwordx4 v[{ZR}:{ZR+3}], v{vUS+i}, s[{sUT}:{sUT+3}], s{sT0} offen')
    k(f's_setpc_b64 s[{sRET}:{sRET+1}]')
    k.label(lcons)
    NSET = (NS + 1) // 2
    vXA = 8
    vWA = vXA + NSET
    vXW = vWA + 4*NSET; vXR = vXW + 1
    vZ2O, vZ1O, vSTW, vSTR, vW64 = vXR+1, vXR+2, vXR+3, vXR+4, vXR+5
    vC1 = vW64 + 1; vC1 += vC1 % 2
    ACC2 = vC1 + 2; ACC2 += (-ACC2) % 4
    ACC1 = ACC2 + 32
    FR = ACC1 + 32
    TMP = FR + 48
    NV = TMP + 24
    assert NV <= 168, NV
    print('NV', NV)
    k(f's_lshr_b32 s{sKGP}, s{sWV}, 2')
    k(f'v_and_b32 v{vR}, 15, v{vL}')
    k(f'v_lshrrev_b32 v{vKG}, 4, v{vL}')
    k(f'v_lshrrev_b32 v{vT}, 1, v{vR}')
    k(f'v_xor_b32 v{vT}, v{vT}, v{vKG}')
    k(f's_lshl_b32 s{sT0}, s{sKGP}, 2')
    k(f'v_xor_b32 v{vT}, s{sT0}, v{vT}')
    k(f'v_lshlrev_b32 v{vT}, 4, v{vT}')
    k(f'v_lshl_add_u32 v{vT}, v{vR}, 7, v{vT}')
    k(f's_and_b32 s{sT0}, s{sWV}, 1')
    k(f's_lshl_b32 s{sT0}, s{sT0}, 12')
    k(f'v_add_u32 v{vXA}, s{sT0}, v{vT}')
    k(f'v_lshrrev_b32 v{vT}, 2, v{vR}')
    k(f'v_lshl_add_u32 v{vT2}, v{vKG}, 3, v{vT}')
    k(f's_lshl_b32 s{sT0}, s{sKGP}, 5')
    k(f'v_add_u32 v{vT2}, s{sT0}, v{vT2}')
    k(f'v_lshlrev_b32 v{vT2}, 8, v{vT2}')
    k(f'v_and_b32 v{vT3}, 3, v{vL}')
    k(f'v_lshl_add_u32 v{vT2}, v{vT3}, 3, v{vT2}')
    k(f'v_and_b32 v{vT3}, 1, v{vKG}')
    k(f'v_lshl_add_u32 v{vT}, v{vT3}, 2, v{vT}')
    k(f's_lshr_b32 s{sT1}, s{sWV}, 1')
    k(f's_and_b32 s{sT1}, s{sT1}, 1')
    k(f's_lshl_b32 s{sT0}, s{sT1}, 2')
    k(f'v_xor_b32 v{vT}, s{sT0}, v{vT}')
    k(f'v_lshl_add_u32 v{vT2}, v{vT}, 5, v{vT2}')
    k(f'v_add_u32 v{vWA}, 8192, v{vT2}')
    for j in range(1, 4):
        k(f'v_xor_b32 v{vWA+j}, {32*j}, v{vWA}')
    for st in range(1, NSET):
        k(f'v_add_u32 v{vXA+st}, {2*STG*st}, v{vXA}')
        for j in range(4):
            k(f'v_add_u32 v{vWA+4*st+j}, {2*STG*st}, v{vWA+j}')
    k(f'v_lshlrev_b32 v{vT}, 4, v{vL}')
    k(f's_lshl_b32 s{sT0}, s{sWV}, 12')
    k(f's_add_u32 s{sT0}, s{sT0}, {XCH}')
    k(f'v_add_u32 v{vXW}, s{sT0}, v{vT}')
    k(f'v_xor_b32 v{vXR}, {4*4096}, v{vXW}')
    assert XCH % 32768 == 0 or True
    k(f's_xor_b32 s{sT0}, s{sWV}, 4')
    k(f's_lshl_b32 s{sT0}, s{sT0}, 12')
    k(f's_add_u32 s{sT0}, s{sT0}, {XCH}')
    k(f'v_add_u32 v{vXR}, s{sT0}, v{vT}')
    k(f's_and_b32 s{sT0}, s{sWV}, 1')
    k(f's_lshl_b32 s{sT0}, s{sT0}, 5')
    k(f's_lshl_b32 s{sT2}, s{sKGP}, 4')
    k(f's_add_u32 s{sT0}, s{sT0}, s{sT2}')
    k(f's_lshl_b32 s{sT1}, s{sT1}, 6')
    k(f'v_add_u32 v{vT}, s{sT1}, v{vR}')
    k(f'v_lshlrev_b32 v{vT}, 12, v{vT}')
    k(f'v_lshl_add_u32 v{vT}, v{vKG}, 3, v{vT}')
    k(f's_lshl_b32 s{sT2}, s{sT0}, 1')
    k(f'v_add_u32 v{vZ2O}, s{sT2}, v{vT}')
    k(f'v_add_u32 v{vT}, s{sT0}, v{vR}')
    k(f'v_mul_u32_u24 v{vT}, 1536, v{vT}')
    k(f'v_and_b32 v{vT2}, 1, v{vKG}')
    k(f'v_lshl_add_u32 v{vT}, v{vT2}, 5, v{vT}')
    k(f'v_lshrrev_b32 v{vT2}, 1, v{vKG}')
    k(f'v_lshl_add_u32 v{vT}, v{vT2}, 4, v{vT}')
    k(f's_lshl_b32 s{sT2}, s{sT1}, 1')
    k(f'v_add_u32 v{vZ1O}, s{sT2}, v{vT}')
    k(f'v_lshl_add_u32 v{vT}, v{vKG}, 2, v{vR}')
    k(f'v_add_u32 v{vT}, s{sT0}, v{vT}')
    k(f'v_lshlrev_b32 v{vT}, 3, v{vT}')
    k(f's_lshr_b32 s{sT1}, s{sT1}, 6')
    k(f's_lshl_b32 s{sT2}, s{sCB}, 1')
    k(f's_add_u32 s{sT1}, s{sT1}, s{sT2}')
    k(f's_lshl_b32 s{sT1}, s{sT1}, 9')
    k(f'v_add_u32 v{vSTW}, s{sT1}, v{vT}')
    k(f'v_lshlrev_b32 v{vT}, 9, v{vR}')
    k(f'v_lshl_add_u32 v{vT}, v{vKG}, 5, v{vT}')
    k(f's_lshl_b32 s{sT2}, s{sT0}, 3')
    k(f'v_add_u32 v{vSTR}, s{sT2}, v{vT}')
    k(f'v_cmp_eq_u32 s[{sM1}:{sM1+1}], 1, v{vR}')
    k(f'v_cmp_eq_u32 s[{sM2}:{sM2+1}], 2, v{vR}')
    k(f'v_cmp_eq_u32 s[{sM3}:{sM3+1}], 3, v{vR}')
    k(f'v_cmp_gt_u32 s[{sEX}:{sEX+1}], 4, v{vR}')
    k(f'v_cmp_gt_u32 s[{sL12}:{sL12+1}], 12, v{vR}')
    k(f'v_mov_b32 v{vC1}, {hex(f2u(GC1))}')
    k(f'v_mov_b32 v{vC1+1}, {hex(f2u(GC1))}')
    k(f'v_mov_b32 v{vT}, 0x42800000')
    k(f'v_cndmask_b32 v{vW64}, 0, v{vT}, s[{sL12}:{sL12+1}]')
    k(f's_mov_b32 s{sC2}, {hex(f2u(GC2))}')
    k(f's_mov_b32 s{sC2+1}, {hex(f2u(GC2))}')
    for r in range(64): k(f'v_mov_b32 v{ACC2+r}, 0')
    k('s_waitcnt lgkmcnt(0)')
    k(f's_mul_i32 s{sT0}, s{sRB}, {64*1536}')
    k(f's_lshl_b32 s{sT1}, s{sCB}, 8')
    k(f's_add_u32 s{sT0}, s{sT0}, s{sT1}')
    k(f's_add_u32 s{sT0}, s{sT0}, {WS_Z1}')
    k.srd(sZ1, sWSp, sWSp+1, 63*1536+256, f's{sT0}')
    k(f's_lshl_b32 s{sT0}, s{sCB}, 19')
    k(f's_lshl_b32 s{sT1}, s{sRB}, 7')
    k(f's_add_u32 s{sT0}, s{sT0}, s{sT1}')
    k(f's_add_u32 s{sT0}, s{sT0}, {WS_Z2T}')
    k.srd(sZ2, sWSp, sWSp+1, 127*4096+128, f's{sT0}')
    k(f's_lshl_b32 s{sT0}, s{sRB}, 13')
    k(f's_add_u32 s{sT0}, s{sT0}, {WS_ST}')
    k.srd(sST, sWSp, sWSp+1, 12*512, f's{sT0}')
    def reads(j):
        stage = j % NS; fs = j % 2
        sset = stage // 2; so = (stage % 2)*STG
        fb = FR + fs*24
        o = [f'ds_read_b128 v[{fb}:{fb+3}], v{vXA+sset} offset:{so}']
        for jj in range(4):
            for h in range(2):
                r = fb + 8 + 4*jj + 2*h
                o.append(f'ds_read_b64_tr_b16 v[{r}:{r+1}], v{vWA+4*sset+jj} offset:{so + h*1024}')
            if jj == 0: o.append(f'ds_read_b128 v[{fb+4}:{fb+7}], v{vXA+sset} offset:{so+2048}')
        return o
    def mf(j):
        fb = FR + (j % 2)*24
        o = []
        for jj in range(4):
            for i in range(2):
                x = fb + 4*i; w = fb + 8 + 4*jj
                if j < 10:
                    a = ACC2 + (i*4+jj)*4
                    o.append(f'v_mfma_f32_16x16x32_bf16 v[{a}:{a+3}], v[{x}:{x+3}], v[{w}:{w+3}], v[{a}:{a+3}]')
                else:
                    a = ACC1 + (i*4+jj)*4
                    o.append(f'v_mfma_f32_16x16x32_bf16 v[{a}:{a+3}], v[{w}:{w+3}], v[{x}:{x+3}], v[{a}:{a+3}]')
        return o
    side = []
    def step(j, pre=(), extra_wait='', nside=0):
        last = j == NKS - 1
        k(f's_waitcnt lgkmcnt(0){extra_wait}')
        rd = []
        if not last:
            k('s_barrier')
            rd = list(pre) + reads(j + 1)
        for _ in range(FRONT):
            if rd: k(rd.pop(0))
        for n, m in enumerate(mf(j)):
            k(m)
            for _ in range(RPM):
                if rd: k(rd.pop(0))
            c = 0
            while side and c < nside:
                g_ = side.pop(0)
                for x in g_: k(x)
                c += len(g_)
        assert not rd
    def exch_write(ACC):
        lab_hi = k.newlabel('xhi'); lab_j = k.newlabel('xj')
        k('s_nop 7')
        k(f's_cmp_lg_u32 s{sKGP}, 0')
        k(f's_cbranch_scc1 {lab_hi}')
        for j in range(4):
            k(f'ds_write_b128 v{vXW}, v[{ACC+16+4*j}:{ACC+19+4*j}] offset:{j*1024}')
        k(f's_branch {lab_j}')
        k.label(lab_hi)
        for j in range(4):
            k(f'ds_write_b128 v{vXW}, v[{ACC+4*j}:{ACC+3+4*j}] offset:{j*1024}')
        k('s_nop 1')
        for r in range(0, 16, 2):
            k(f'v_pk_add_f32 v[{ACC+r}:{ACC+r+1}], v[{ACC+16+r}:{ACC+17+r}], 0 op_sel_hi:[1,0]')
        k.label(lab_j)
    k('s_barrier')
    k.stamp(1)
    for r in reads(0): k(r)
    for j in range(10): step(j)
    k.stamp(2)
    exch_write(ACC2)
    Z = ACC2; E = ACC2 + 16
    step(10, pre=[f'ds_read_b128 v[{E+4*j}:{E+4*j+3}], v{vXR} offset:{j*1024}' for j in range(4)])
    kmain = k
    k = KB('side')
    for r in range(0, 16, 2):
        k(f'v_pk_add_f32 v[{Z+r}:{Z+r+1}], v[{Z+r}:{Z+r+1}], v[{E+r}:{E+r+1}]')
    for j in range(4): rnd_unpack(k, Z+4*j, E+2*j)
    gelu_pk(k, Z, 16, E, sC2, vC1)
    for j in range(4): rnd_unpack(k, Z+4*j, E+2*j)
    S = TMP; Q = TMP + 4; P = TMP + 8
    for r in (0, 2):
        k(f'v_pk_add_f32 v[{S+r}:{S+r+1}], v[{Z+r}:{Z+r+1}], v[{Z+4+r}:{Z+5+r}]')
        k(f'v_pk_add_f32 v[{Q+r}:{Q+r+1}], v[{Z+8+r}:{Z+9+r}], v[{Z+12+r}:{Z+13+r}]')
    for r in (0, 2):
        k(f'v_pk_add_f32 v[{S+r}:{S+r+1}], v[{S+r}:{S+r+1}], v[{Q+r}:{Q+r+1}]')
    k('s_nop 0')
    allreduce16(k, [S, S+1, S+2, S+3])
    for r in range(4):
        k(f'v_mul_f32 v{S+r}, 0x3c800000, v{S+r}')
    for j in range(4):
        for r in (0, 2):
            k(f'v_pk_add_f32 v[{E+4*j+r}:{E+4*j+r+1}], v[{Z+4*j+r}:{Z+4*j+r+1}], v[{S+r}:{S+r+1}] neg_lo:[0,1] neg_hi:[0,1]')
    for r in (0, 2):
        k(f'v_pk_mul_f32 v[{Q+r}:{Q+r+1}], v[{E+r}:{E+r+1}], v[{E+r}:{E+r+1}]')
    for j in (1, 2, 3):
        for r in (0, 2):
            k(f'v_pk_fma_f32 v[{Q+r}:{Q+r+1}], v[{E+4*j+r}:{E+4*j+r+1}], v[{E+4*j+r}:{E+4*j+r+1}], v[{Q+r}:{Q+r+1}]')
    k('s_nop 0')
    allreduce16(k, [Q, Q+1, Q+2, Q+3])
    k(f'v_cndmask_b32 v{P}, v{S}, v{S+1}, s[{sM1}:{sM1+1}]')
    k(f'v_cndmask_b32 v{P+1}, v{Q}, v{Q+1}, s[{sM1}:{sM1+1}]')
    k(f'v_cndmask_b32 v{P}, v{P}, v{S+2}, s[{sM2}:{sM2+1}]')
    k(f'v_cndmask_b32 v{P+1}, v{P+1}, v{Q+2}, s[{sM2}:{sM2+1}]')
    k(f'v_cndmask_b32 v{P}, v{P}, v{S+3}, s[{sM3}:{sM3+1}]')
    k(f'v_cndmask_b32 v{P+1}, v{P+1}, v{Q+3}, s[{sM3}:{sM3+1}]')
    k(f's_mov_b64 exec, s[{sEX}:{sEX+1}]')
    k(f'buffer_store_dwordx2 v[{P}:{P+1}], v{vSTW}, s[{sST}:{sST+3}], 0 offen sc1')
    k('s_mov_b64 exec, -1')
    lines = [l.strip() for l in k.L]
    k = kmain
    n_ = len(lines)
    side += [[l] for l in lines[:n_-3]] + [lines[n_-3:]]
    k.stamp(3)
    for j in range(11, NKS):
        step(j, extra_wait=' vmcnt(0)' if j == FLAGSTEP else '', nside=NSIDE)
        if j == FLAGSTEP - 1: assert not side, len(side)
    k.stamp(4)
    exch_write(ACC1)
    k('s_waitcnt lgkmcnt(0)')
    k('s_barrier')
    k.stamp(5)
    A = TMP + 8
    for r in range(8): k(f'v_mov_b32 v{A+r}, 0')
    Y = ACC1; E1 = ACC1 + 16
    for j in range(4):
        k(f'ds_read_b128 v[{E1+4*j}:{E1+4*j+3}], v{vXR} offset:{j*1024}')
    k(f's_mov_b64 exec, s[{sL12}:{sL12+1}]')
    k(f'buffer_load_dwordx4 v[{A}:{A+3}], v{vSTR}, s[{sST}:{sST+3}], 0 offen sc1')
    k(f'buffer_load_dwordx4 v[{A+4}:{A+7}], v{vSTR}, s[{sST}:{sST+3}], 0 offen offset:16 sc1')
    k('s_mov_b64 exec, -1')
    k('s_waitcnt lgkmcnt(0)')
    for r in range(0, 16, 2):
        k(f'v_pk_add_f32 v[{Y+r}:{Y+r+1}], v[{Y+r}:{Y+r+1}], v[{E1+r}:{E1+r+1}]')
    for j in range(4): rnd_unpack(k, Y+4*j, E1+2*j)
    gelu_pk(k, Y, 16, E1, sC2, vC1)
    for pp in range(2):
        res = E1 + 4*pp
        for i in range(2):
            y = Y + 8*pp + 4*i
            k(f'v_cvt_pk_bf16_f32 v{res+2*i}, v{y}, v{y+1}')
            k(f'v_cvt_pk_bf16_f32 v{res+2*i+1}, v{y+2}, v{y+3}')
        k('s_nop 1')
        k(f'v_permlane16_swap_b32 v{res}, v{res+2}')
        k(f'v_permlane16_swap_b32 v{res+1}, v{res+3}')
        k(f'buffer_store_dwordx4 v[{res}:{res+3}], v{vZ1O}, s[{sZ1}:{sZ1+3}], 0 offen offset:{64*pp}')
    k.stamp(6)
    k('s_waitcnt vmcnt(2)')
    Mn = TMP; Vr = TMP + 4; T2 = TMP + 16
    for r in range(4): k(f'v_mov_b32 v{Mn+r}, v{A+2*r}')
    k('s_nop 0')
    allreduce16(k, [Mn, Mn+1, Mn+2, Mn+3])
    k(f's_mov_b32 s{sT0}, {hex(f2u(1.0/12))}')
    for r in range(4): k(f'v_mul_f32 v{Mn+r}, s{sT0}, v{Mn+r}')
    for r in range(4): k(f'v_sub_f32 v{A+2*r}, v{A+2*r}, v{Mn+r}')
    for r in range(4): k(f'v_mul_f32 v{A+2*r}, v{A+2*r}, v{A+2*r}')
    for r in range(4): k(f'v_fma_f32 v{Vr+r}, v{A+2*r}, v{vW64}, v{A+2*r+1}')
    k('s_nop 0')
    allreduce16(k, [Vr, Vr+1, Vr+2, Vr+3])
    k(f's_mov_b32 s{sT0}, {hex(f2u(1.0/768))}')
    for r in range(4): k(f'v_mul_f32 v{Vr+r}, s{sT0}, v{Vr+r}')
    rnd_unpack(k, Mn, T2)
    rnd_unpack(k, Vr, T2+2)
    for r in range(4): k(f'v_add_f32 v{Vr+r}, {hex(f2u(1e-5))}, v{Vr+r}')
    rnd_unpack(k, Vr, T2)
    for r in range(4): k(f'v_sqrt_f32 v{Vr+r}, v{Vr+r}')
    k('s_nop 0')
    rnd_unpack(k, Vr, T2)
    for r in range(4): k(f'v_rcp_f32 v{Vr+r}, v{Vr+r}')
    for j in range(4):
        for r in (0, 2):
            k(f'v_pk_add_f32 v[{Z+4*j+r}:{Z+4*j+r+1}], v[{Z+4*j+r}:{Z+4*j+r+1}], v[{Mn+r}:{Mn+r+1}] neg_lo:[0,1] neg_hi:[0,1]')
    for j in range(4): rnd_unpack(k, Z+4*j, E+2*j)
    for j in range(4):
        for r in (0, 2):
            k(f'v_pk_mul_f32 v[{Z+4*j+r}:{Z+4*j+r+1}], v[{Z+4*j+r}:{Z+4*j+r+1}], v[{Vr+r}:{Vr+r+1}]')
    for j in range(4):
        k(f'v_cvt_pk_bf16_f32 v{E+8+2*j}, v{Z+4*j}, v{Z+4*j+1}')
        k(f'v_cvt_pk_bf16_f32 v{E+9+2*j}, v{Z+4*j+2}, v{Z+4*j+3}')
        k(f's_mov_b32 s{sT0}, {j*16*4096}')
        k(f'buffer_store_dwordx2 v[{E+8+2*j}:{E+9+2*j}], v{vZ2O}, s[{sZ2}:{sZ2+3}], s{sT0} offen')
    k.stamp(7)
    k.stamp_flush(8, sWSp)
    return XCH + 32768, 168

if __name__ == '__main__':
    import sys
    k = KB('k1')
    k.stamps = len(sys.argv) > 1
    if len(sys.argv) > 3: FRONT = int(sys.argv[2]); RPM = int(sys.argv[3])
    k('s_cmp_ge_u32 s2, 192')
    k('s_cbranch_scc1 k1_end')
    lds, nv = gemm1b_role(k)
    k.label('k1_end')
    k('s_endpgm')
    print(lds, nv)
    open('g1b.s', 'w').write(wrap('gemm1 test', [('k1_kernel', 192, 768, lds)], [('k1_kernel', k.text(), nv, 100)]))
```

```python
from asmlib import *
from layout import *
from gemm3 import rnd_unpack, unpack4

RPM = 1
ROT = 1
def gemm2b_role(k, NS=6, endlabel='k2_end'):
    STG = 24576
    sWSP, sBSP, sWS = 4, 6, 8
    sZ, sW, sZ1, sH, sB = 12, 16, 20, 24, 28
    sTT, sTF, sWV, sK, sMZ, sMW, sT0, sT1, sCNT = 32, 33, 34, 35, 36, 37, 38, 39, 40
    NKS = 32
    k.stamp(0)
    k(f's_load_dwordx4 s[{sWSP}:{sWSP+3}], s[0:1], {KA["w_sp"]}')
    k(f's_load_dwordx2 s[{sWS}:{sWS+1}], s[0:1], {KA["ws"]}')
    vL, vT, vT2, vT3 = 1, 2, 3, 4
    k(f'v_lshrrev_b32 v{vT}, 6, v0')
    k(f'v_and_b32 v{vL}, 63, v0')
    k(f'v_readfirstlane_b32 s{sWV}, v{vT}')
    k(f's_and_b32 s{sT0}, s2, 7')
    k(f's_lshr_b32 s{sT1}, s2, 3')
    k(f's_lshr_b32 s{sTT}, s{sT0}, 1')
    k(f's_lshl_b32 s{sTT}, s{sTT}, 2')
    k(f's_and_b32 s{sTF}, s{sT1}, 3')
    k(f's_add_u32 s{sTT}, s{sTT}, s{sTF}')
    k(f's_and_b32 s{sTF}, s{sT0}, 1')
    k(f's_mul_i32 s{sTF}, s{sTF}, 6')
    k(f's_lshr_b32 s{sT1}, s{sT1}, 2')
    k(f's_add_u32 s{sTF}, s{sTF}, s{sT1}')
    k(f's_cmp_ge_u32 s{sWV}, 8')
    k(f's_cbranch_scc1 {endlabel}')
    lcons = k.newlabel('cons')
    k(f's_cmp_lt_u32 s{sWV}, 4')
    k(f's_cbranch_scc1 {lcons}')
    vDZ, vDW = 5, 7
    k(f's_sub_u32 s{sWV}, s{sWV}, 4')
    k(f'v_lshrrev_b32 v{vT}, 3, v{vL}')
    k(f'v_and_b32 v{vT2}, 7, v{vL}')
    k(f'v_lshrrev_b32 v{vT3}, 1, v{vT}')
    k(f'v_xor_b32 v{vT2}, v{vT2}, v{vT3}')
    k(f'v_lshlrev_b32 v{vT2}, 4, v{vT2}')
    k(f'v_lshl_add_u32 v{vT2}, v{vT}, 12, v{vT2}')
    k(f'v_xor_b32 v{vT3}, 64, v{vT2}')
    k(f's_lshl_b32 s{sT0}, s{sWV}, 16')
    k(f'v_add_u32 v{vDZ}, s{sT0}, v{vT2}')
    k(f's_add_u32 s{sT0}, s{sT0}, 32768')
    k(f'v_add_u32 v{vDZ+1}, s{sT0}, v{vT3}')
    for q in range(4):
        k(f's_lshl_b32 s{sT0}, s{sWV}, 17')
        k(f's_add_u32 s{sT0}, s{sT0}, {q*32768}')
        k(f'v_add_u32 v{vDW+q}, s{sT0}, v{vT3 if q % 2 else vT2}')
    k(f's_lshl_b32 s{sMZ}, s{sWV}, 11')
    k(f's_lshl_b32 s{sMW}, s{sWV}, 12')
    k(f's_add_u32 s{sMW}, s{sMW}, 8192')
    k(f's_lshr_b32 s{sK}, s2, 3')
    k(f's_lshl_b32 s{sK}, s{sK}, 7')
    if not ROT: k(f's_mov_b32 s{sK}, 0')
    k('s_waitcnt lgkmcnt(0)')
    k(f's_lshl_b32 s{sT0}, s{sTF}, 18')
    k(f's_add_u32 s{sT0}, s{sT0}, {WS_Z2T}')
    k.srd(sZ, sWS, sWS+1, 64*4096, f's{sT0}')
    k(f's_lshl_b32 s{sT0}, s{sTT}, 19')
    k.srd(sW, sWSP, sWSP+1, 128*4096, f's{sT0}')
    def group(stage):
        for q in range(6):
            if q < 2:
                k(f's_add_u32 m0, s{sMZ}, {stage*STG + q*1024}')
                k('s_nop 0')
                k(f'buffer_load_dwordx4 v{vDZ+q}, s[{sZ}:{sZ+3}], s{sK} offen lds')
            else:
                k(f's_add_u32 m0, s{sMW}, {stage*STG + (q-2)*1024}')
                k('s_nop 0')
                k(f'buffer_load_dwordx4 v{vDW+q-2}, s[{sW}:{sW+3}], s{sK} offen lds')
        k(f's_add_u32 s{sK}, s{sK}, 128')
        k(f's_and_b32 s{sK}, s{sK}, 0xfff')
    for st in range(2): group(st)
    k(f's_waitcnt vmcnt(6)')
    k('s_barrier')
    for st in range(2, NS): group(st)
    def lstep(j):
        lastg = min(j - 1 + NS, NKS - 1)
        k(f's_waitcnt vmcnt({6*max(0, lastg - (j+1))})')
        k('s_barrier')
        if j + NS < NKS: group(j % NS)
    nsteady = NKS - NS
    nloop = nsteady // NS
    k(f's_mov_b32 s{sCNT}, {nloop}')
    ll = k.newlabel('lloop')
    k.label(ll)
    for s_ in range(NS): lstep(s_)
    k(f's_sub_u32 s{sCNT}, s{sCNT}, 1')
    k(f's_cmp_lg_u32 s{sCNT}, 0')
    k(f's_cbranch_scc1 {ll}')
    for j in range(nloop*NS, NKS-1): lstep(j)
    k('s_endpgm')
    k.label(lcons)
    NSET = (NS + 1) // 2
    vFA = 5
    vFB = vFA + 2*NSET
    vEO = vFB + 2*NSET
    vBS = vEO + 2
    vBS += vBS % 2
    vZ1 = vBS + 4
    ACC = vZ1 + 16
    FR = ACC + 32
    NV = FR + 96
    k(f'v_and_b32 v{vT}, 15, v{vL}')
    k(f'v_lshrrev_b32 v{vT2}, 4, v{vL}')
    k(f'v_lshrrev_b32 v{vT3}, 1, v{vT}')
    k(f'v_xor_b32 v{vT3}, v{vT3}, v{vT2}')
    k(f'v_lshlrev_b32 v{vT3}, 4, v{vT3}')
    k(f'v_lshl_add_u32 v{vT3}, v{vT}, 7, v{vT3}')
    k(f's_and_b32 s{sT0}, s{sWV}, 1')
    k(f's_lshl_b32 s{sT0}, s{sT0}, 12')
    k(f's_lshr_b32 s{sT1}, s{sWV}, 1')
    k(f's_lshl_b32 s{sT1}, s{sT1}, 13')
    k(f's_add_u32 s{sT1}, s{sT1}, 8192')
    k(f'v_add_u32 v{vFA}, s{sT0}, v{vT3}')
    k(f'v_add_u32 v{vFB}, s{sT1}, v{vT3}')
    k(f'v_xor_b32 v{vFA+1}, 64, v{vFA}')
    k(f'v_xor_b32 v{vFB+1}, 64, v{vFB}')
    for st in range(1, NSET):
        for b in (vFA, vFB):
            k(f'v_add_u32 v{b+2*st}, {2*STG*st}, v{b}')
            k(f'v_add_u32 v{b+2*st+1}, {2*STG*st}, v{b+1}')
    k(f's_lshr_b32 s{sT1}, s{sWV}, 1')
    k(f's_lshl_b32 s{sT1}, s{sT1}, 6')
    k(f'v_add_u32 v{vEO}, s{sT1}, v{vT}')
    k(f'v_lshlrev_b32 v{vEO+1}, 1, v{vEO}')
    k(f'v_mul_u32_u24 v{vEO}, 1536, v{vEO}')
    k(f's_and_b32 s{sT0}, s{sWV}, 1')
    k(f's_lshl_b32 s{sT0}, s{sT0}, 6')
    k(f'v_lshl_add_u32 v{vEO}, v{vT2}, 3, v{vEO}')
    k(f'v_add_u32 v{vEO}, s{sT0}, v{vEO}')
    vSO = 0
    k(f'v_add_u32 v{vT3}, s{sT1}, v{vT}')
    k(f'v_mul_u32_u24 v{vT3}, 1536, v{vT3}')
    k(f'v_and_b32 v{vT}, 1, v{vT2}')
    k(f'v_lshl_add_u32 v{vT3}, v{vT}, 5, v{vT3}')
    k(f'v_lshrrev_b32 v{vT}, 1, v{vT2}')
    k(f'v_lshl_add_u32 v{vT3}, v{vT}, 4, v{vT3}')
    k(f'v_add_u32 v{vSO}, s{sT0}, v{vT3}')
    for r in range(32): k(f'v_mov_b32 v{ACC+r}, 0')
    k('s_waitcnt lgkmcnt(0)')
    k(f's_mul_i32 s{sT0}, s{sTT}, {128*1536}')
    k(f's_lshl_b32 s{sT1}, s{sTF}, 7')
    k(f's_add_u32 s{sT0}, s{sT0}, s{sT1}')
    k(f's_add_u32 s{sT1}, s{sT0}, {WS_Z1}')
    k.srd(sZ1, sWS, sWS+1, 127*1536+128, f's{sT1}')
    k(f's_add_u32 s{sT1}, s{sT0}, {WS_H}')
    k.srd(sH, sWS, sWS+1, 127*1536+128, f's{sT1}')
    k(f's_lshl_b32 s{sT0}, s{sTT}, 8')
    k.srd(sB, sBSP, sBSP+1, 256, f's{sT0}')
    for j in range(4):
        k(f'buffer_load_ushort v{vBS+j}, v{vEO+1}, s[{sB}:{sB+3}], 0 offen offset:{32*j}')
    for j in range(4):
        k(f's_mov_b32 s{sT0}, {j*16*1536}')
        for i in range(2):
            r = vZ1 + 2*(j*2+i)
            k(f'buffer_load_dwordx2 v[{r}:{r+1}], v{vEO}, s[{sZ1}:{sZ1+3}], s{sT0} offen offset:{i*32}')
    def reads(stage, fs):
        sset = 2*(stage // 2); so = (stage % 2)*STG
        out = []
        for ks in range(2):
            fb = FR + fs*48 + ks*24
            out.append(f'ds_read_b128 v[{fb}:{fb+3}], v{vFA+sset+ks} offset:{so}')
            out.append(f'ds_read_b128 v[{fb+8}:{fb+11}], v{vFB+sset+ks} offset:{so}')
            out.append(f'ds_read_b128 v[{fb+4}:{fb+7}], v{vFA+sset+ks} offset:{so+2048}')
            for j in range(1, 4):
                out.append(f'ds_read_b128 v[{fb+8+4*j}:{fb+11+4*j}], v{vFB+sset+ks} offset:{so+2048*j}')
        return out
    def mfmas(fs):
        out = []
        for ks in range(2):
            fb = FR + fs*48 + ks*24
            for j in range(4):
                for i in range(2):
                    a = ACC + 4*(j*2+i)
                    out.append(f'v_mfma_f32_16x16x32_bf16 v[{a}:{a+3}], v[{fb+4*i}:{fb+4*i+3}], v[{fb+8+4*j}:{fb+11+4*j}], v[{a}:{a+3}]')
        return out
    k('s_barrier')
    k.stamp(1)
    for r in reads(0, 0): k(r)
    def cstep(j):
        last = j == NKS - 1
        k('s_waitcnt lgkmcnt(0)')
        rd = []
        if not last:
            k('s_barrier')
            rd = reads((j + 1) % NS, (j + 1) % 2)
        for n, m in enumerate(mfmas(j % 2)):
            k(m)
            for _ in range(RPM):
                if rd: k(rd.pop(0))
    assert NS % 2 == 0
    nl = (NKS - 1) // NS
    k(f's_mov_b32 s{sCNT}, {nl}')
    lc = k.newlabel('cloop')
    k.label(lc)
    for s_ in range(NS): cstep(s_)
    k(f's_sub_u32 s{sCNT}, s{sCNT}, 1')
    k(f's_cmp_lg_u32 s{sCNT}, 0')
    k(f's_cbranch_scc1 {lc}')
    for j in range(nl*NS, NKS): cstep(j)
    k.stamp(2)
    k('s_waitcnt vmcnt(0)')
    for j in range(4):
        k(f'v_lshlrev_b32 v{vBS+j}, 16, v{vBS+j}')
    k('s_nop 3')
    T = FR
    for j in range(4):
        res = T + 32 + 4*j
        for i in range(2):
            a = ACC + 4*(j*2+i); z = vZ1 + 2*(j*2+i); t = T + 8*((j*2+i) % 4)
            rnd_unpack(k, a, t)
            for r in (0, 2):
                k(f'v_pk_add_f32 v[{a+r}:{a+r+1}], v[{a+r}:{a+r+1}], v[{vBS+j}:{vBS+j+1}] op_sel_hi:[1,0]' if (vBS + j) % 2 == 0 else
                  f'v_pk_add_f32 v[{a+r}:{a+r+1}], v[{a+r}:{a+r+1}], v[{vBS+j-1}:{vBS+j}] op_sel:[0,1] op_sel_hi:[1,1]')
            rnd_unpack(k, a, t)
            unpack4(k, t+2, z)
            for r in (0, 2):
                k(f'v_pk_mul_f32 v[{a+r}:{a+r+1}], v[{a+r}:{a+r+1}], v[{t+2+r}:{t+3+r}]')
            k(f'v_cvt_pk_bf16_f32 v{res+2*i}, v{a}, v{a+1}')
            k(f'v_cvt_pk_bf16_f32 v{res+2*i+1}, v{a+2}, v{a+3}')
        k(f's_mov_b32 s{sT0}, {j*16*1536}')
        k('s_nop 0')
        k(f'v_permlane16_swap_b32 v{res}, v{res+2}')
        k(f'v_permlane16_swap_b32 v{res+1}, v{res+3}')
        k(f'buffer_store_dwordx4 v[{res}:{res+3}], v{vSO}, s[{sH}:{sH+3}], s{sT0} offen')
    k.stamp(3)
    k.stamp_flush(4, sWS)
    return NS*STG, NV

if __name__ == '__main__':
    import sys
    k = KB('k2')
    k.stamps = len(sys.argv) > 1
    if len(sys.argv) > 2: ROT = 0
    k('s_cmp_ge_u32 s2, 192')
    k('s_cbranch_scc1 k2_end')
    lds, nv = gemm2b_role(k)
    k.label('k2_end')
    k('s_endpgm')
    print(lds, nv)
    open('g2b.s', 'w').write(wrap('gemm2 test', [('k2_kernel', 192, 640, lds)], [('k2_kernel', k.text(), 168 if k.stamps else nv, 100)]))
```

```python
from asmlib import *
from layout import *
from gemm3 import rnd_unpack, unpack4
from gemm1 import f2u, LOG2E
import math

WLDS = 20480
R0, R1O, R1E, R2O, R2E, R3O, R3E = [2*x for x in (0, 304, 496, 688, 816, 944, 1024)]
R0P, R3P = 2208, 2816
UB = 3136; U0 = UB + 16
C3B = 7248; C3_0 = C3B + 32
C5B = 10864; C5_0 = C5B + 32
C7B = 13968; C7_0 = C7B + 32
C9B = 16048; C9_0 = C9B + 32
F2B = 18128; F2_0 = F2B + 32
XY = 3136; XYP = 272
XROWS = list(range(8)) + [258, 262, 260, 264, 516, 520, 772, 776, 1032, 1288, 1544, 1800, 8]

def cmul(k, P, A, B, t):
    k(f'v_pk_mul_f32 v[{t}:{t+1}], v[{A}:{A+1}], v[{B}:{B+1}] op_sel:[0,0] op_sel_hi:[0,1]')
    k(f'v_pk_fma_f32 v[{P}:{P+1}], v[{A}:{A+1}], v[{B}:{B+1}], v[{t}:{t+1}] op_sel:[1,1,0] op_sel_hi:[1,0,1] neg_lo:[0,1,0]')

def stream(k, items, ring, nbuf, ahead):
    n = len(items)
    issued = []
    def issue(i):
        r = items[i][0](ring + 4*(i % nbuf))
        for x in r: k(x)
        issued.append(sum(1 for x in r if x.startswith('ds_')))
    for i in range(min(ahead, n)): issue(i)
    for i in range(n):
        after = sum(issued[i+1:])
        assert after <= 15
        k(f's_waitcnt lgkmcnt({after})')
        m = items[i][1](ring + 4*(i % nbuf))
        k(m[0])
        if i + ahead < n: issue(i + ahead)
        for x in m[1:]: k(x)

def ssm_role(k, sID, use_u2=False):
    sP = 4
    k.stamp(0)
    k(f's_load_dwordx8 s[4:11], s[0:1], {KA["A_re"]}')
    k(f's_load_dwordx8 s[12:19], s[0:1], {KA["C_re"]}')
    k(f's_load_dwordx2 s[20:21], s[0:1], {KA["ws"]}')
    sWV, sD, sT0, sT1, sLB, sCNT, sDS, sPO = 22, 23, 24, 25, 26, 27, 28, 29
    SR = 32
    sUT, sAT = 56, 60
    vL, vX, vKG, vT, vT2, vT3 = 1, 2, 3, 4, 5, 6
    vPO = 7
    vXW = 8
    vXR = 9
    vDT = 10
    vUO = 11
    PS = 12
    PA = 208
    UL = 20
    DK = 52
    W0 = 68
    k(f'v_lshrrev_b32 v{vT}, 6, v0')
    k(f'v_and_b32 v{vL}, 63, v0')
    k(f'v_readfirstlane_b32 s{sWV}, v{vT}')
    k(f'v_lshlrev_b32 v{vPO}, 1, v{vL}')
    k(f's_lshl_b32 s{sD}, s{sID}, 2')
    k(f's_add_u32 s{sD}, s{sD}, s{sWV}')
    k(f's_mul_i32 s{sLB}, s{sWV}, {WLDS}')
    k(f's_mul_i32 s{sT0}, s{sD}, 384')
    for r in range(18): k(f'v_mov_b32 v{PA+r}, 0')
    k('s_waitcnt lgkmcnt(0)')
    k(f's_lshr_b32 s{sT1}, s{sD}, 1')
    k(f's_lshl_b32 s{sT1}, s{sT1}, 2')
    k(f's_load_dword s{sDS+2}, s[16:17], s{sT1}')
    k(f's_load_dword s{sDS+3}, s[18:19], s{sT1}')
    for a in range(6):
        k.srd(SR+4*a, 4+2*a, 5+2*a, 384, f's{sT0}')
    for p_ in range(3):
        for a in range(6):
            k(f'buffer_load_short_d16_hi v{PA+6*p_+a}, v{vPO}, s[{SR+4*a}:{SR+4*a+3}], 0 offen offset:{128*p_}')
    k(f's_mul_i32 s{sT0}, s{sD}, {UT_PITCH*2}')
    k(f's_add_u32 s{sT0}, s{sT0}, {WS_UT}')
    k.srd(sUT, 20, 21, UT_PITCH*2, f's{sT0}')
    k(f's_lshl_b32 s{sT0}, s{sD}, 12')
    k(f's_add_u32 s{sT0}, s{sT0}, {WS_AT}')
    k.srd(sAT, 20, 21, 4096, f's{sT0}')
    k(f'v_lshlrev_b32 v{vUO}, 4, v{vL}')
    for q in range(4):
        for h in range(2):
            r = UL + 8*q + 4*h
            k(f'buffer_load_dwordx4 v[{r}:{r+3}], v{vUO}, s[{sUT}:{sUT+3}], 0 offen offset:{(UT_PAD - 20 + 512*q + 8*h)*2}')
    k(f'v_and_b32 v{vX}, 15, v{vL}')
    k(f'v_lshrrev_b32 v{vKG}, 4, v{vL}')
    k(f'v_lshlrev_b32 v{vXW}, 2, v{vL}')
    k(f'v_add_u32 v{vXW}, s{sLB}, v{vXW}')
    k(f'v_and_b32 v{vT}, 31, v{vL}')
    k(f'v_mul_u32_u24 v{vT}, {XYP}, v{vT}')
    k(f'v_lshrrev_b32 v{vT2}, 5, v{vL}')
    k(f'v_lshl_add_u32 v{vT}, v{vT2}, 4, v{vT}')
    k(f'v_add_u32 v{vXR}, s{sLB}, v{vT}')
    for r in range(4): k(f'v_mov_b32 v{W0+r}, 0')
    k(f'v_lshlrev_b32 v{vT}, 4, v{vL}')
    k(f'v_add_u32 v{vT}, s{sLB}, v{vT}')
    k(f'ds_write_b128 v{vT}, v[{W0}:{W0+3}]')
    k(f'ds_write_b128 v{vT}, v[{W0}:{W0+3}] offset:1024')
    k('s_mov_b64 exec, 0xffff')
    k(f'ds_write_b128 v{vT}, v[{W0}:{W0+3}] offset:2048')
    k('s_mov_b64 exec, -1')
    for r in range(16): k(f'v_mov_b32 v{DK+r}, 0')
    k('s_waitcnt lgkmcnt(0)')
    k(f's_and_b32 s{sT0}, s{sD}, 1')
    k(f's_cmp_eq_u32 s{sT0}, 1')
    for (src, dst) in ((sDS+2, sT1), (sDS+3, sDS)):
        k(f's_lshl_b32 s{sT0}, s{src}, 16')
        k(f's_and_b32 s{src}, s{src}, 0xffff0000')
    k.L = k.L[:-5]
    k(f's_lshl_b32 s{sT1}, s{sDS+2}, 16')
    k(f's_and_b32 s{sDS+2}, s{sDS+2}, 0xffff0000')
    k(f's_lshl_b32 s{sDS}, s{sDS+3}, 16')
    k(f's_and_b32 s{sDS+3}, s{sDS+3}, 0xffff0000')
    k(f's_bitcmp1_b32 s{sD}, 0')
    k(f's_cselect_b32 s{sT1}, s{sDS+2}, s{sT1}')
    k(f's_cselect_b32 s{sDS}, s{sDS+3}, s{sDS}')
    Lhi = f2u(LOG2E); import struct
    Lhi_f = struct.unpack('<f', struct.pack('<I', Lhi))[0]
    Llo = LOG2E - Lhi_f
    k(f'v_mov_b32 v{vT}, s{sT1}')
    k(f's_mov_b32 s{sT0}, {hex(Lhi)}')
    k(f'v_mul_f32 v{vT2}, s{sT0}, v{vT}')
    k(f'v_fma_f32 v{vT3}, v{vT}, s{sT0}, -v{vT2}')
    k(f'v_fmac_f32 v{vT3}, {hex(f2u(Llo))}, v{vT}')
    k(f'v_exp_f32 v{vT2}, v{vT2}')
    k(f'v_mul_f32 v{vT3}, {hex(f2u(math.log(2.0)))}, v{vT3}')
    k(f'v_fma_f32 v{vDT}, v{vT2}, v{vT3}, v{vT2}')
    k(f'v_cvt_pk_bf16_f32 v{vDT}, v{vDT}, v{vDT}')
    k(f'v_lshlrev_b32 v{vDT}, 16, v{vDT}')
    A2, B2 = W0, W0+1
    E1, E8, E16, E256, E512 = W0+2, W0+4, W0+6, W0+8, W0+10
    TT = W0+12
    T2 = W0+14
    XV = W0+16
    xreg = {}
    nxt = XV
    for l in list(range(9)) + [516, 520, 1032, 1544]:
        xreg[l] = nxt; nxt += 2
    TX = nxt; nxt += 2
    YA, YB = nxt, nxt+2; nxt += 4
    PK = nxt; nxt += 4
    FA = nxt; nxt += 32
    k(f's_mov_b32 s{sCNT}, 0')
    k(f's_mov_b32 s{sPO}, 0')
    k.stamp(6)
    k('s_waitcnt vmcnt(8)')
    k.stamp(7)
    lp = k.newlabel('kg')
    k.label(lp)
    for r in range(0, 6, 2):
        k(f'v_pk_add_f32 v[{PS+r}:{PS+r+1}], v[{PA+r}:{PA+r+1}], 0 op_sel_hi:[1,0]')
    for r in range(0, 12, 2):
        k(f'v_pk_add_f32 v[{PA+r}:{PA+r+1}], v[{PA+6+r}:{PA+7+r}], 0 op_sel_hi:[1,0]')
    X0 = xreg[0]
    k(f'v_mul_f32 v{A2}, v{vDT}, v{PS}')
    k(f'v_mul_f32 v{B2}, v{vDT}, v{PS+1}')
    k(f'v_pk_mul_f32 v[{TT}:{TT+1}], v[{PS+2}:{PS+3}], v[{vDT}:{vDT+1}] op_sel_hi:[1,0]')
    k(f'v_mul_f32 v{A2}, {hex(f2u(LOG2E))}, v{A2}')
    k(f'v_mul_f32 v{B2}, {hex(f2u(1/(2*math.pi)))}, v{B2}')
    cmul(k, X0, PS+4, TT, T2)
    def anchor(E, l, t):
        if l == 1:
            k(f'v_exp_f32 v{t}, v{A2}')
            k(f'v_fract_f32 v{t+1}, v{B2}')
        else:
            k(f'v_mul_f32 v{t}, {hex(f2u(float(l)))}, v{A2}')
            k(f'v_mul_f32 v{t+1}, {hex(f2u(float(l)))}, v{B2}')
            k(f'v_exp_f32 v{t}, v{t}')
            k(f'v_fract_f32 v{t+1}, v{t+1}')
        k(f'v_cos_f32 v{E}, v{t+1}')
        k(f'v_sin_f32 v{E+1}, v{t+1}')
        k('s_nop 0')
        k(f'v_pk_mul_f32 v[{E}:{E+1}], v[{E}:{E+1}], v[{t}:{t+1}] op_sel_hi:[1,0]')
    anchor(E1, 1, TT); anchor(E8, 8, T2); anchor(E16, 16, TT); anchor(E256, 256, T2); anchor(E512, 512, TT)
    pk = [0]
    def putX(l, reg):
        row = XROWS.index(l)
        p = PK + (pk[0] % 4); pk[0] += 1
        k(f'v_cvt_pk_bf16_f32 v{p}, v{reg}, -v{reg+1}')
        k(f'ds_write_b32 v{vXW}, v{p} offset:{XY + row*XYP}')
    def putY(j, reg):
        p = PK + (pk[0] % 4); pk[0] += 1
        k(f'v_cvt_pk_bf16_f32 v{p}, v{reg}, v{reg+1}')
        k(f'ds_write_b32 v{vXW}, v{p} offset:{XY + (21+j)*XYP}')
    putX(0, X0)
    k(f'v_mov_b32 v{PK+3}, 0x3f80')
    k(f'ds_write_b32 v{vXW}, v{PK+3} offset:{XY + 21*XYP}')
    putY(1, E8); putY(2, E16)
    xs = [(h, xreg[h], xreg[h-1], E1) for h in range(1, 9)]
    xs += [(258, TX, xreg[2], E256), (260, TX, xreg[4], E256), (262, TX, xreg[6], E256), (264, TX, xreg[8], E256),
           (516, xreg[516], xreg[4], E512), (520, xreg[520], xreg[8], E512), (772, TX, xreg[516], E256), (776, TX, xreg[520], E256),
           (1032, xreg[1032], xreg[520], E512), (1288, TX, xreg[1032], E256), (1544, xreg[1544], xreg[1032], E512), (1800, TX, xreg[1544], E256)]
    ya_src, yb_src = E8, E16
    for j in range(3, 32):
        if j % 2 == 1:
            cmul(k, YA, ya_src, E16, TT); ya_src = YA; putY(j, YA)
        else:
            cmul(k, YB, yb_src, E16, T2); yb_src = YB; putY(j, YB)
        if xs:
            l, dst, a, b = xs.pop(0)
            cmul(k, dst, a, b, FA); putX(l, dst)
    assert not xs
    k('s_waitcnt lgkmcnt(0)')
    items = []
    for ks in range(8):
        def rd(b, ks=ks):
            return [f'ds_read_b128 v[{b}:{b+3}], v{vXR} offset:{XY + ks*32}',
                    f'ds_read_b128 v[{b+16}:{b+19}], v{vXR} offset:{XY + 21*XYP + ks*32}']
        def mm(b):
            return [f'v_mfma_f32_32x32x16_bf16 v[{DK}:{DK+15}], v[{b}:{b+3}], v[{b+16}:{b+19}], v[{DK}:{DK+15}]']
        items.append((rd, mm))
    stream(k, items, FA, 4, 3)
    k(f's_add_u32 s{sCNT}, s{sCNT}, 1')
    k(f's_cmp_lt_u32 s{sCNT}, 3')
    k(f's_cbranch_scc1 {lp}')
    k.stamp(1)
    for q in range(4):
        k(f's_add_u32 m0, s{sLB}, {U0 + 1024*q - (UT_PAD*2 + 1024*q)}')
        k('s_nop 0')
        k(f'buffer_load_dwordx4 v{vUO}, s[{sUT}:{sUT+3}], 0 offen offset:{UT_PAD*2 + 1024*q} lds')
    V = W0
    k(f'v_mov_b32 v{V}, 0')
    k(f'v_mov_b32 v{V+1}, 0')
    k(f'v_mov_b32 v{vT}, s{sLB}')
    k(f'ds_write2_b64 v{vT}, v[{V}:{V+1}], v[{V}:{V+1}] offset0:{UB//8 - 256 if False else 0} offset1:1' if False else f'ds_write_b64 v{vT}, v[{V}:{V+1}] offset:{UB}')
    k(f'ds_write_b64 v{vT}, v[{V}:{V+1}] offset:{UB+8}')
    k('s_waitcnt vmcnt(4)')
    k(f'v_add_u32 v{vUO}, s{sLB}, v{vUO}')
    def windows(qa, full):
        Ue = V
        lo = -4 if full else -2
        hi = 11 if full else 9
        ue = lambda i, c=0: Ue + 2*(i+4) + c
        for c in range(2):
            src = UL + 8*(qa + c)
            for i in range(lo, hi+1):
                d = src + (i+4)//2
                if (i+4) % 2 == 0: k(f'v_lshlrev_b32 v{ue(i,c)}, 16, v{d}')
                else: k(f'v_and_b32 v{ue(i,c)}, 0xffff0000, v{d}')
        Pe = Ue + 32
        pe = lambda i, c=0: Pe + 2*(i+4) + c
        Ce = Pe + 30
        ce = lambda i, c=0: Ce + 2*(i+3) + c
        PKR = Ce + 22
        def add(d, a, b): k(f'v_pk_add_f32 v[{d}:{d+1}], v[{a}:{a+1}], v[{b}:{b+1}]')
        def out(fn, base0, lim):
            for c in range(2):
                q = qa + c
                nl = (lim - 512*q + 7) // 8
                nl = max(0, min(64, nl))
                if nl == 0: continue
                pr = PKR + 4*c
                for e in range(4):
                    k(f'v_cvt_pk_bf16_f32 v{pr+e}, v{fn(2*e, c)}, v{fn(2*e+1, c)}')
                if nl < 64:
                    m = (1 << nl) - 1
                    k(f's_mov_b32 exec_lo, {hex(m & 0xffffffff)}'); k(f's_mov_b32 exec_hi, {hex(m >> 32)}')
                k(f'ds_write_b128 v{vUO}, v[{pr}:{pr+3}] offset:{base0 + 1024*q}')
                if nl < 64: k('s_mov_b64 exec, -1')
        for i in range(lo, hi): add(pe(i), ue(i), ue(i+1))
        if full: out(pe, F2B, 1040)
        c3lo = -3 if full else -1
        for i in range(c3lo, 8): add(ce(i), pe(i-1), ue(i+1))
        out(ce, C3B, 1808)
        for i in range(7, c3lo, -1): add(ce(i), ce(i-1), pe(i+1))
        out(ce, C5B, 1552)
        if full:
            for i in range(7, -2, -1): add(ce(i), ce(i-1), pe(i+2))
            out(ce, C7B, 1040)
            for i in range(7, -1, -1): add(ce(i), ce(i-1), pe(i+3))
            out(ce, C9B, 1040)
    windows(0, True)
    windows(2, True if FULL23 else False)
    vJ, vH = vT, vT2
    k(f'v_and_b32 v{vJ}, 31, v{vL}')
    k(f'v_lshrrev_b32 v{vH}, 5, v{vL}')
    a0, a1, a2, a3 = V, V+1, V+2, V+3
    p = V + 4
    k(f'v_lshlrev_b32 v{a0}, 4, v{vJ}')
    k(f'v_lshl_add_u32 v{a0}, v{vH}, 3, v{a0}')
    k(f'v_sub_u32 v{a0}, s{sLB}, v{a0}')
    k(f'v_cvt_pk_bf16_f32 v{p}, v{DK+3}, v{DK+2}')
    k(f'v_cvt_pk_bf16_f32 v{p+1}, v{DK+1}, v{DK}')
    k(f'v_add_u32 v{a0}, {R0 + 568}, v{a0}')
    k(f'ds_write_b64 v{a0}, v[{p}:{p+1}]')
    k(f'v_cvt_pk_bf16_f32 v{p+2}, v{DK+5}, v{DK+4}')
    k(f'v_cvt_pk_bf16_f32 v{p+3}, v{DK+7}, v{DK+6}')
    k(f'v_cvt_pk_bf16_f32 v{p+4}, v{DK+8}, v{DK+9}')
    k(f'v_cvt_pk_bf16_f32 v{p+5}, v{DK+10}, v{DK+11}')
    k(f'v_cvt_pk_bf16_f32 v{p+6}, v{DK+8}, v{DK+8}')
    k(f'v_lshlrev_b32 v{a1}, 2, v{vJ}')
    k(f'v_sub_u32 v{a1}, s{sLB}, v{a1}')
    k(f'v_add_u32 v{a1}, 252, v{a1}')
    k(f'v_lshlrev_b32 v{a2}, 1, v{vJ}')
    k(f'v_sub_u32 v{a2}, s{sLB}, v{a2}')
    k(f'v_add_u32 v{a2}, {2*63}, v{a2}')
    k(f'v_lshrrev_b32 v{a3}, 1, v{vJ}')
    k(f'v_lshlrev_b32 v{a3}, 1, v{a3}')
    k(f'v_sub_u32 v{a3}, s{sLB}, v{a3}')
    k(f'v_and_b32 v{vH}, 1, v{vJ}')
    k(f'v_mul_u32_u24 v{vH}, {R3E - R3O}, v{vH}')
    k(f'v_add3_u32 v{a3}, v{a3}, v{vH}, {2*(63-48)}')
    k('s_mov_b32 exec_hi, 0')
    k(f'ds_write_b32 v{a1}, v{p+2} offset:{R1O}')
    k(f'ds_write_b32 v{a1}, v{p+3} offset:{R1E}')
    k(f'ds_write_b16 v{a3}, v{p+4} offset:{R3O + 96}')
    k(f'ds_write_b16_d16_hi v{a3}, v{p+4} offset:{R3O + 64}')
    k(f'ds_write_b16 v{a3}, v{p+5} offset:{R3O + 32}')
    k(f'ds_write_b16_d16_hi v{a3}, v{p+5} offset:{R3O}')
    k('s_mov_b32 exec_lo, 0x80000000')
    k(f'ds_write_b16 v{a1}, v{p+3} offset:{R1O - 2}')
    k('s_mov_b32 exec_lo, 0')
    k('s_mov_b32 exec_hi, -1')
    k(f'ds_write_b16_d16_hi v{a2}, v{p+2} offset:{R2O + 64}')
    k(f'ds_write_b16 v{a2}, v{p+2} offset:{R2E + 64}')
    k(f'ds_write_b16_d16_hi v{a2}, v{p+3} offset:{R2O}')
    k(f'ds_write_b16 v{a2}, v{p+3} offset:{R2E}')
    k('s_mov_b32 exec_hi, 0x80000000')
    k(f'v_mov_b32 v{a0}, s{sLB}')
    k(f'ds_write_b32 v{a0}, v{p+6} offset:{R0 + 60}')
    k('s_mov_b64 exec, -1')
    k(f'v_lshlrev_b32 v{a0}, 2, v{vL}')
    k(f'v_add_u32 v{a0}, s{sLB}, v{a0}')
    k(f'v_add_u32 v{a1}, {R3O}, v{a0}')
    rounds = [(a0, 0, R0P), (a0, 64, R0P + 256), (a0, 128, R0P + 512), (a1, 0, R3P - R3O), (a1, 64, R3P - R3O + 256)]
    for n_, (ad, o, dst) in enumerate(rounds):
        k(f'ds_read2_b32 v[{p+2*n_}:{p+2*n_+1}], v{ad} offset0:{o} offset1:{o+1}')
    for n_, (ad, o, dst) in enumerate(rounds):
        k(f's_waitcnt lgkmcnt({4 if n_ else 4})')
        k(f'v_alignbit_b32 v{p+2*n_}, v{p+2*n_+1}, v{p+2*n_}, 16')
        if n_ == 4: k('s_mov_b64 exec, 0xffff')
        k(f'ds_write_b32 v{ad}, v{p+2*n_} offset:{dst}')
    k('s_mov_b64 exec, -1')
    k.stamp(2)
    vK0, vK1, vK2, vK3, vU, vD1, vD2, vD3, vDF, vR4, vC4 = V+12, V+13, V+14, V+15, V+16, V+17, V+18, V+19, V+20, V+21, V+22
    vEU, vEO = V+23, V+24
    k(f'v_lshlrev_b32 v{vT}, 4, v{vKG}')
    k(f'v_lshl_add_u32 v{vT2}, v{vX}, 1, v{vT}')
    k(f'v_sub_u32 v{vK0}, s{sLB}, v{vT2}')
    k(f'v_add_u32 v{vK0}, {R0P - 2 + 2*(295-256)}, v{vK0}')
    k(f'v_and_b32 v{vEU}, 1, v{vX}')
    k(f'v_mul_u32_u24 v{vEO}, {R0P - 2 - R0}, v{vEU}')
    k(f'v_sub_u32 v{vK0}, v{vK0}, v{vEO}')
    k(f'v_add_u32 v{vT3}, s{sLB}, v{vT}')
    k(f'v_lshlrev_b32 v{vT2}, 3, v{vX}')
    k(f'v_sub_u32 v{vK1}, v{vT3}, v{vT2}')
    k(f'v_add_u32 v{vK1}, {120 + R1O}, v{vK1}')
    k(f'v_lshlrev_b32 v{vT2}, 2, v{vX}')
    k(f'v_sub_u32 v{vK2}, v{vT3}, v{vT2}')
    k(f'v_add_u32 v{vK2}, {60 + R2O}, v{vK2}')
    k(f'v_and_b32 v{vT2}, 1, v{vKG}')
    k(f'v_lshrrev_b32 v{vT3}, 1, v{vKG}')
    k(f'v_mul_u32_u24 v{vK3}, {R3E - R3O}, v{vT3}')
    k(f'v_lshl_add_u32 v{vK3}, v{vT2}, 4, v{vK3}')
    k(f'v_lshlrev_b32 v{vR4}, 1, v{vX}')
    k(f'v_sub_u32 v{vK3}, v{vK3}, v{vR4}')
    k(f'v_add_u32 v{vK3}, s{sLB}, v{vK3}')
    k(f'v_add_u32 v{vK3}, {R3P - 2 + 30}, v{vK3}')
    k(f'v_mul_u32_u24 v{vEO}, {R3P - 2 - R3O}, v{vEU}')
    k(f'v_sub_u32 v{vK3}, v{vK3}, v{vEO}')
    k(f'v_lshlrev_b32 v{vU}, 5, v{vX}')
    k(f'v_sub_u32 v{vU}, v{vU}, v{vT}')
    k(f'v_add_u32 v{vU}, s{sLB}, v{vU}')
    k(f'v_lshrrev_b32 v{vR4}, 2, v{vX}')
    k(f'v_and_b32 v{vC4}, 3, v{vX}')
    k(f'v_lshlrev_b32 v{vC4}, 3, v{vC4}')
    k(f'v_add_u32 v{vC4}, s{sLB}, v{vC4}')
    k(f'v_lshl_add_u32 v{vD1}, v{vKG}, 3, v{vR4}')
    k(f'v_lshl_add_u32 v{vD2}, v{vD1}, 4, v{vC4}')
    k(f'v_lshl_add_u32 v{vD1}, v{vD1}, 3, v{vC4}')
    k(f'v_lshl_add_u32 v{vD3}, v{vT2}, 3, v{vR4}')
    k(f'v_lshl_add_u32 v{vD3}, v{vD3}, 5, v{vC4}')
    k(f'v_mul_u32_u24 v{vT3}, {(C9_0 - 32) - (C7_0 - 16)}, v{vT3}')
    k(f'v_add_u32 v{vD3}, v{vT3}, v{vD3}')
    k(f'v_lshl_add_u32 v{vDF}, v{vKG}, 2, v{vR4}')
    k(f'v_lshl_add_u32 v{vDF}, v{vDF}, 5, v{vC4}')
    k(f'v_lshlrev_b32 v{vEO}, 5, v{vX}')
    k(f'v_lshl_add_u32 v{vEO}, v{vKG}, 3, v{vEO}')
    k(f'v_add_u32 v{vEU}, s{sLB}, v{vEO}')
    ACC = V + 28
    KF = ACC + 32
    RG = KF + 40
    FX = RG + 32
    NVS = FX + 4
    for r in range(32): k(f'v_mov_b32 v{ACC+r}, 0')
    def rd4(r, addr, off):
        o = off // 4
        assert off % 4 == 0 and o + 3 <= 255
        k(f'ds_read2_b32 v[{r}:{r+1}], v{addr} offset0:{o} offset1:{o+1}')
        k(f'ds_read2_b32 v[{r+2}:{r+3}], v{addr} offset0:{o+2} offset1:{o+3}')
    k(f'v_mov_b32 v{vT}, s{sLB}')
    k(f'ds_read_u16 v{FX+2}, v{vT} offset:{R2E + 64}')
    for c in range(4):
        rd4(KF+4*c, vK3, 32*c)
    for li, base in enumerate((R2O, R2E)):
        for c in range(3):
            r = KF + 16 + 12*li + 4*c
            rd4(r, vK2, base - R2O + 64*c)
    k(f'v_lshlrev_b32 v{vT2}, 2, v{vKG}')
    k(f'v_sub_u32 v{vT2}, v{vX}, v{vT2}')
    k('s_waitcnt lgkmcnt(15)')
    k('s_waitcnt lgkmcnt(0)')
    k(f'v_lshlrev_b32 v{FX+3}, 16, v{FX+2}')
    for half in range(2):
        k(f'v_cmp_eq_u32 vcc, {2*half}, v{vT2}')
        k(f'v_mov_b32 v{FX+half}, 0')
        k(f'v_cmp_eq_u32 s[{sT0}:{sT0+1}], {2*half+1}, v{vT2}')
        k(f'v_cndmask_b32 v{FX+half}, v{FX+half}, v{FX+2}, vcc')
        k('s_nop 0')
        k(f'v_cndmask_b32 v{FX+half}, v{FX+half}, v{FX+3}, s[{sT0}:{sT0+1}]')
    acc = lambda T: f'v[{ACC+4*T}:{ACC+4*T+3}]'
    def M(T, a, b): return f'v_mfma_f32_16x16x32_bf16 {acc(T)}, v[{a}:{a+3}], v[{b}:{b+3}], {acc(T)}'
    def trp(addr, off, hstep):
        return lambda b: [f'ds_read_b64_tr_b16 v[{b}:{b+1}], v{addr} offset:{off}',
                          f'ds_read_b64_tr_b16 v[{b+2}:{b+3}], v{addr} offset:{off + hstep}']
    items = []
    for cp in range(4):
        items.append((trp(vD3, C7_0 - 16 + 512*cp, 128),
                      lambda b, cp=cp: [M(4 + cp + n, b, KF + 4*(3 - n)) for n in range(4 - cp)]))
    for T in range(4, 8):
        items.append((lambda b, T=T: [f'ds_read_b64_tr_b16 v[{b}:{b+1}], v{vDF} offset:{F2_0 - 8 + 512*(T-4)}'],
                      lambda b, T=T: [f'v_mfma_f32_16x16x16_bf16 {acc(T)}, v[{b}:{b+1}], v[{FX}:{FX+1}], {acc(T)}']))
    for cp in range(6):
        for li, base in enumerate((C3_0 - 24, C5_0 - 32)):
            items.append((trp(vD2, base + 512*cp, 64),
                          lambda b, cp=cp, li=li: [M(cp + 2 + n, b, KF + 16 + 12*li + 4*(2 - n)) for n in range(3) if cp + 2 + n <= 7]))
    k('s_waitcnt lgkmcnt(0)')
    stream(k, items, RG, 8, 6)
    k.stamp(3)
    k(f'v_lshlrev_b32 v{vT}, 4, v{vL}')
    for q in range(4):
        k(f's_add_u32 m0, s{sLB}, {C7B - (UT_PAD-14)*2}')
        k('s_nop 0')
        k(f'buffer_load_dwordx4 v{vT}, s[{sUT}:{sUT+3}], 0 offen offset:{(UT_PAD-14)*2 + 1024*q} lds')
    for sg in range(9):
        rd4(KF+4*sg, vK0, 64*(8-sg))
    k('s_waitcnt vmcnt(4)')
    k(f's_add_u32 s{sT0}, s{sLB}, {UB}')
    k(f'v_mov_b32 v{vT3}, s{sT0}')
    items = []
    for phi in range(-7, 57):
        T = -((-phi) // 8)
        def mm(b, phi=phi, T=T):
            o = [M(T, KF + 4*(8*T - phi), b)]
            if phi % 8 == 0 and T + 1 <= 7: o.append(M(T + 1, KF + 32, b))
            return o
        if phi <= 0:
            items.append((lambda b, phi=phi: [f'v_add_u32 v{vT2}, {U0 + 16 + 64*phi}, v{vU}', f'v_max_i32 v{vT2}, v{vT3}, v{vT2}', f'ds_read_b128 v[{b}:{b+3}], v{vT2}'], mm))
        else:
            items.append((lambda b, phi=phi: [f'ds_read_b128 v[{b}:{b+3}], v{vU} offset:{U0 + 16 + 64*phi}'], mm))
    k('s_waitcnt lgkmcnt(0)')
    stream(k, items, RG, 8, 6)
    k.stamp(4)
    for li, base in enumerate((R1O, R1E)):
        for c in range(4):
            r = KF + 16*li + 4*c
            o = (base - R1O + 64*c) // 8
            k(f'ds_read2_b64 v[{r}:{r+3}], v{vK1} offset0:{o} offset1:{o+1}')
    k('s_waitcnt vmcnt(0)')
    items = []
    for cp in range(14):
        for li, base in enumerate((C7B, C3_0 - 32)):
            T1 = cp//2 + 1
            def mm(b, cp=cp, li=li, T1=T1):
                o = [M(T1, b, KF + 16*li + 4*(cp % 2 + 2))]
                if T1 + 1 <= 7: o.append(M(T1 + 1, b, KF + 16*li + 4*(cp % 2)))
                return o
            items.append((trp(vD1, base + 256*cp, 32), mm))
    k('s_waitcnt lgkmcnt(0)')
    stream(k, items, RG, 8, 6)
    k.stamp(5)
    for T in range(8):
        k(f'ds_read_b64 v[{KF+2*T}:{KF+2*T+1}], v{vEU} offset:{U0 + 512*T}')
    k(f's_mov_b32 s{sDS+1}, s{sDS}')
    for T in range(8):
        a = ACC + 4*T
        t = RG + 8*(T % 4)
        k(f's_waitcnt lgkmcnt({7-T})')
        unpack4(k, t, KF + 2*T)
        for r in (0, 2):
            k(f'v_pk_mul_f32 v[{t+r}:{t+r+1}], v[{t+r}:{t+r+1}], s[{sDS}:{sDS+1}]')
        rnd_unpack(k, a, t+4)
        rnd_unpack(k, t, t+6)
        for r in (0, 2):
            k(f'v_pk_add_f32 v[{a+r}:{a+r+1}], v[{a+r}:{a+r+1}], v[{t+r}:{t+r+1}]')
        k(f'v_cvt_pk_bf16_f32 v{t+4}, v{a}, v{a+1}')
        k(f'v_cvt_pk_bf16_f32 v{t+5}, v{a+2}, v{a+3}')
        k(f'buffer_store_dwordx2 v[{t+4}:{t+5}], v{vEO}, s[{sAT}:{sAT+3}], 0 offen offset:{512*T}')
    k.stamp_flush(8, 20)
    return 4*WLDS, max(NVS, nxt, V + 32 + 30 + 22 + 8, PA + 18)

FULL23 = True
if __name__ == '__main__':
    import sys
    k = KB('ks')
    k.stamps = len(sys.argv) > 1
    k('s_cmp_ge_u32 s2, 160')
    k('s_cbranch_scc1 ks_end')
    lds, nv = ssm_role(k, 2)
    k.label('ks_end')
    k('s_endpgm')
    print('nv', nv)
    open('gs.s', 'w').write(wrap('ssm test', [('ks_kernel', 160, 256, lds)], [('ks_kernel', k.text(), 256 if k.stamps else nv, 100)]))
```

```python
from asmlib import *
from layout import *
from gemm3 import rnd_unpack, unpack4
from gemm1 import f2u, LOG2E
from ssm import cmul, stream, XROWS
import math, struct

R0, R1O, R1E, R2O, R2E, R3O, R3E = [2*x for x in (0, 304, 496, 688, 816, 944, 1024)]
R0P, R3P = 2208, 2816
KLP = 3136
def setexec(k, nl):
    m = (1 << nl) - 1
    if nl <= 32 and False: pass
    k(f's_mov_b32 exec_lo, {hex(m & 0xffffffff)}'); k(f's_mov_b32 exec_hi, {hex(m >> 32)}')

KW = 14464
def kgen_role(k, sID, prefetch=True):
    XY = 0; XYP = 272
    k.stamp(0)
    k(f's_load_dwordx8 s[4:11], s[0:1], {KA["A_re"]}')
    k(f's_load_dwordx4 s[12:15], s[0:1], {KA["C_re"]}')
    k(f's_load_dwordx2 s[16:17], s[0:1], {KA["log_dt"]}')
    k(f's_load_dwordx2 s[20:21], s[0:1], {KA["ws"]}')
    k(f's_load_dwordx2 s[18:19], s[0:1], {KA["w_sp"]}')
    k(f's_load_dwordx2 s[60:61], s[0:1], {KA["w_out"]}')
    sWV, sD, sT0, sT1, sLB, sCNT, sLD = 22, 23, 24, 25, 26, 27, 28
    SR = 32; sKL = 56; sPF = 64; sPF2 = 68
    vL, vT, vT2, vT3, vPO, vXW, vXR, vDT = 1, 2, 3, 4, 5, 6, 7, 8
    PS = 10; PA = 16; DK = 36; W0 = 52
    k(f'v_lshrrev_b32 v{vT}, 6, v0')
    k(f'v_and_b32 v{vL}, 63, v0')
    k(f'v_readfirstlane_b32 s{sWV}, v{vT}')
    k(f'v_lshlrev_b32 v{vPO}, 1, v{vL}')
    k(f's_mul_i32 s{sD}, s{sID}, 10')
    k(f's_add_u32 s{sD}, s{sD}, s{sWV}')
    k(f's_mul_i32 s{sLB}, s{sWV}, {KW}')
    k(f's_mul_i32 s{sT0}, s{sD}, 384')
    for r in range(18): k(f'v_mov_b32 v{PA+r}, 0')
    k(f's_lshr_b32 s{sT1}, s{sD}, 1')
    k(f's_lshl_b32 s{sT1}, s{sT1}, 2')
    k('s_waitcnt lgkmcnt(0)')
    k(f's_load_dword s{sLD}, s[16:17], s{sT1}')
    for a in range(6):
        k.srd(SR+4*a, 4+2*a, 5+2*a, 384, f's{sT0}')
    for p_ in range(3):
        for a in range(6):
            k(f'buffer_load_short_d16_hi v{PA+6*p_+a}, v{vPO}, s[{SR+4*a}:{SR+4*a+3}], 0 offen offset:{128*p_}')
    k(f's_mul_i32 s{sT0}, s{sD}, {KLP}')
    k(f's_add_u32 s{sT0}, s{sT0}, {WS_KL}')
    k.srd(sKL, 20, 21, KLP, f's{sT0}')
    k(f's_mul_i32 s{sT0}, s{sD}, 13312')
    k.srd(sPF, 18, 19, 0, f's{sT0}')
    k(f's_sub_u32 s{sT1}, {2048*4096}, s{sT0}')
    k(f's_max_i32 s{sT1}, s{sT1}, 0')
    k(f's_min_u32 s{sPF+2}, s{sT1}, 13312')
    k(f's_mul_i32 s{sT0}, s{sD}, 1536')
    k.srd(sPF2, 60, 61, 1536, f's{sT0}')
    k(f'v_lshlrev_b32 v{vXW}, 2, v{vL}')
    k(f'v_add_u32 v{vXW}, s{sLB}, v{vXW}')
    k(f'v_and_b32 v{vT}, 31, v{vL}')
    k(f'v_mul_u32_u24 v{vT}, {XYP}, v{vT}')
    k(f'v_lshrrev_b32 v{vT2}, 5, v{vL}')
    k(f'v_lshl_add_u32 v{vT}, v{vT2}, 4, v{vT}')
    k(f'v_add_u32 v{vXR}, s{sLB}, v{vT}')
    for r in range(16): k(f'v_mov_b32 v{DK+r}, 0')
    k('s_waitcnt lgkmcnt(0)')
    k(f's_lshl_b32 s{sT1}, s{sLD}, 16')
    k(f's_and_b32 s{sLD}, s{sLD}, 0xffff0000')
    k(f's_bitcmp1_b32 s{sD}, 0')
    k(f's_cselect_b32 s{sT1}, s{sLD}, s{sT1}')
    Lhi = f2u(LOG2E); Lhi_f = struct.unpack('<f', struct.pack('<I', Lhi))[0]; Llo = LOG2E - Lhi_f
    k(f'v_mov_b32 v{vT}, s{sT1}')
    k(f's_mov_b32 s{sT0}, {hex(Lhi)}')
    k(f'v_mul_f32 v{vT2}, s{sT0}, v{vT}')
    k(f'v_fma_f32 v{vT3}, v{vT}, s{sT0}, -v{vT2}')
    k(f'v_fmac_f32 v{vT3}, {hex(f2u(Llo))}, v{vT}')
    k(f'v_exp_f32 v{vT2}, v{vT2}')
    k(f'v_mul_f32 v{vT3}, {hex(f2u(math.log(2.0)))}, v{vT3}')
    k(f'v_fma_f32 v{vDT}, v{vT2}, v{vT3}, v{vT2}')
    k(f'v_cvt_pk_bf16_f32 v{vDT}, v{vDT}, v{vDT}')
    k(f'v_lshlrev_b32 v{vDT}, 16, v{vDT}')
    A2, B2 = W0, W0+1
    E1, E8, E16, E256, E512 = W0+2, W0+4, W0+6, W0+8, W0+10
    TT, T2 = W0+12, W0+14
    xreg = {}; nxt = W0+16
    for l in list(range(9)) + [516, 520, 1032, 1544]:
        xreg[l] = nxt; nxt += 2
    TX = nxt; nxt += 2
    YA, YB = nxt, nxt+2; nxt += 4
    PK = nxt; nxt += 4
    FA = nxt; nxt += 32
    PFR = nxt; nxt += 4
    k(f'v_lshlrev_b32 v{vPO}, 4, v{vL}')
    k(f's_mov_b32 s{sCNT}, 0')
    k('s_waitcnt vmcnt(0)')
    k.stamp(1)
    lp = k.newlabel('kg')
    k.label(lp)
    X0 = xreg[0]
    k(f'v_mul_f32 v{A2}, v{vDT}, v{PA}')
    k(f'v_mul_f32 v{B2}, v{vDT}, v{PA+1}')
    k(f'v_pk_mul_f32 v[{TT}:{TT+1}], v[{PA+2}:{PA+3}], v[{vDT}:{vDT+1}] op_sel_hi:[1,0]')
    k(f'v_mul_f32 v{A2}, {hex(f2u(LOG2E))}, v{A2}')
    k(f'v_mul_f32 v{B2}, {hex(f2u(1/(2*math.pi)))}, v{B2}')
    cmul(k, X0, PA+4, TT, T2)
    for r in range(0, 12, 2):
        k(f'v_pk_add_f32 v[{PA+r}:{PA+r+1}], v[{PA+6+r}:{PA+7+r}], 0 op_sel_hi:[1,0]')
    if prefetch:
        k(f's_mul_i32 s{sT0}, s{sCNT}, 5120')
        for q in range(5):
            if q < 4: k(f'buffer_load_dwordx4 v[{PFR}:{PFR+3}], v{vPO}, s[{sPF}:{sPF+3}], s{sT0} offen offset:{1024*q}')
            else:
                k(f's_add_u32 s{sT1}, s{sT0}, 4096')
                k(f'buffer_load_dwordx4 v[{PFR}:{PFR+3}], v{vPO}, s[{sPF}:{sPF+3}], s{sT1} offen')
        k(f's_lshl_b32 s{sT0}, s{sCNT}, 10')
        k(f'buffer_load_dwordx4 v[{PFR}:{PFR+3}], v{vPO}, s[{sPF2}:{sPF2+3}], s{sT0} offen')
    def anchor(E, l, t):
        if l == 1:
            k(f'v_exp_f32 v{t}, v{A2}')
            k(f'v_fract_f32 v{t+1}, v{B2}')
        else:
            k(f'v_mul_f32 v{t}, {hex(f2u(float(l)))}, v{A2}')
            k(f'v_mul_f32 v{t+1}, {hex(f2u(float(l)))}, v{B2}')
            k(f'v_exp_f32 v{t}, v{t}')
            k(f'v_fract_f32 v{t+1}, v{t+1}')
        k(f'v_cos_f32 v{E}, v{t+1}')
        k(f'v_sin_f32 v{E+1}, v{t+1}')
        k('s_nop 0')
        k(f'v_pk_mul_f32 v[{E}:{E+1}], v[{E}:{E+1}], v[{t}:{t+1}] op_sel_hi:[1,0]')
    anchor(E1, 1, TT); anchor(E8, 8, T2); anchor(E16, 16, TT); anchor(E256, 256, T2); anchor(E512, 512, TT)
    pk = [0]
    def putX(l, reg):
        row = XROWS.index(l); p = PK + (pk[0] % 4); pk[0] += 1
        k(f'v_cvt_pk_bf16_f32 v{p}, v{reg}, -v{reg+1}')
        k(f'ds_write_b32 v{vXW}, v{p} offset:{XY + row*XYP}')
    def putY(j, reg):
        p = PK + (pk[0] % 4); pk[0] += 1
        k(f'v_cvt_pk_bf16_f32 v{p}, v{reg}, v{reg+1}')
        k(f'ds_write_b32 v{vXW}, v{p} offset:{XY + (21+j)*XYP}')
    putX(0, X0)
    k(f'v_mov_b32 v{PK+3}, 0x3f80')
    k(f'ds_write_b32 v{vXW}, v{PK+3} offset:{XY + 21*XYP}')
    putY(1, E8); putY(2, E16)
    xs = [(h, xreg[h], xreg[h-1], E1) for h in range(1, 9)]
    xs += [(258, TX, xreg[2], E256), (260, TX, xreg[4], E256), (262, TX, xreg[6], E256), (264, TX, xreg[8], E256),
           (516, xreg[516], xreg[4], E512), (520, xreg[520], xreg[8], E512), (772, TX, xreg[516], E256), (776, TX, xreg[520], E256),
           (1032, xreg[1032], xreg[520], E512), (1288, TX, xreg[1032], E256), (1544, xreg[1544], xreg[1032], E512), (1800, TX, xreg[1544], E256)]
    ya_src, yb_src = E8, E16
    for j in range(3, 32):
        if j % 2 == 1:
            cmul(k, YA, ya_src, E16, TT); ya_src = YA; putY(j, YA)
        else:
            cmul(k, YB, yb_src, E16, T2); yb_src = YB; putY(j, YB)
        if xs:
            l, dst, a, b = xs.pop(0)
            cmul(k, dst, a, b, FA); putX(l, dst)
    k('s_waitcnt lgkmcnt(0)')
    items = []
    for ks in range(8):
        def rd(b, ks=ks):
            return [f'ds_read_b128 v[{b}:{b+3}], v{vXR} offset:{XY + ks*32}',
                    f'ds_read_b128 v[{b+16}:{b+19}], v{vXR} offset:{XY + 21*XYP + ks*32}']
        def mm(b):
            return [f'v_mfma_f32_32x32x16_bf16 v[{DK}:{DK+15}], v[{b}:{b+3}], v[{b+16}:{b+19}], v[{DK}:{DK+15}]']
        items.append((rd, mm))
    stream(k, items, FA, 4, 3)
    k(f's_add_u32 s{sCNT}, s{sCNT}, 1')
    k(f's_cmp_lt_u32 s{sCNT}, 3')
    k(f's_cbranch_scc1 {lp}')
    k.stamp(2)
    V = W0
    for r in range(4): k(f'v_mov_b32 v{V+r}, 0')
    vLB16 = vXR
    k(f'v_add_u32 v{vLB16}, s{sLB}, v{vPO}')
    for q in range(3):
        k(f'ds_write_b128 v{vLB16}, v[{V}:{V+3}] offset:{1024*q}')
    vJ, vH = vT, vT2
    k(f'v_and_b32 v{vJ}, 31, v{vL}')
    k(f'v_lshrrev_b32 v{vH}, 5, v{vL}')
    a0, a1, a2, a3 = V+4, V+5, V+6, V+7
    p = V + 8
    k(f'v_lshlrev_b32 v{a0}, 4, v{vJ}')
    k(f'v_lshl_add_u32 v{a0}, v{vH}, 3, v{a0}')
    k(f'v_sub_u32 v{a0}, s{sLB}, v{a0}')
    k(f'v_add_u32 v{a0}, {R0 + 568}, v{a0}')
    k(f'v_lshlrev_b32 v{a1}, 2, v{vJ}')
    k(f'v_sub_u32 v{a1}, s{sLB}, v{a1}')
    k(f'v_add_u32 v{a1}, 252, v{a1}')
    k(f'v_lshlrev_b32 v{a2}, 1, v{vJ}')
    k(f'v_sub_u32 v{a2}, s{sLB}, v{a2}')
    k(f'v_add_u32 v{a2}, {2*63}, v{a2}')
    k(f'v_lshrrev_b32 v{a3}, 1, v{vJ}')
    k(f'v_lshlrev_b32 v{a3}, 1, v{a3}')
    k(f'v_sub_u32 v{a3}, s{sLB}, v{a3}')
    k(f'v_and_b32 v{vH}, 1, v{vJ}')
    k(f'v_mul_u32_u24 v{vH}, {R3E - R3O}, v{vH}')
    k(f'v_add3_u32 v{a3}, v{a3}, v{vH}, {2*(63-48)}')
    k(f'v_cvt_pk_bf16_f32 v{p}, v{DK+3}, v{DK+2}')
    k(f'v_cvt_pk_bf16_f32 v{p+1}, v{DK+1}, v{DK}')
    k(f'ds_write_b64 v{a0}, v[{p}:{p+1}]')
    k(f'v_cvt_pk_bf16_f32 v{p+2}, v{DK+5}, v{DK+4}')
    k(f'v_cvt_pk_bf16_f32 v{p+3}, v{DK+7}, v{DK+6}')
    k(f'v_cvt_pk_bf16_f32 v{p+4}, v{DK+8}, v{DK+9}')
    k(f'v_cvt_pk_bf16_f32 v{p+5}, v{DK+10}, v{DK+11}')
    k(f'v_cvt_pk_bf16_f32 v{p+6}, v{DK+8}, v{DK+8}')
    k('s_mov_b32 exec_hi, 0')
    k(f'ds_write_b32 v{a1}, v{p+2} offset:{R1O}')
    k(f'ds_write_b32 v{a1}, v{p+3} offset:{R1E}')
    k(f'ds_write_b16 v{a3}, v{p+4} offset:{R3O + 96}')
    k(f'ds_write_b16_d16_hi v{a3}, v{p+4} offset:{R3O + 64}')
    k(f'ds_write_b16 v{a3}, v{p+5} offset:{R3O + 32}')
    k(f'ds_write_b16_d16_hi v{a3}, v{p+5} offset:{R3O}')
    k('s_mov_b32 exec_lo, 0x80000000')
    k(f'ds_write_b16 v{a1}, v{p+3} offset:{R1O - 2}')
    k('s_mov_b32 exec_lo, 0')
    k('s_mov_b32 exec_hi, -1')
    k(f'ds_write_b16_d16_hi v{a2}, v{p+2} offset:{R2O + 64}')
    k(f'ds_write_b16 v{a2}, v{p+2} offset:{R2E + 64}')
    k(f'ds_write_b16_d16_hi v{a2}, v{p+3} offset:{R2O}')
    k(f'ds_write_b16 v{a2}, v{p+3} offset:{R2E}')
    k('s_mov_b32 exec_hi, 0x80000000')
    k(f'v_mov_b32 v{a0}, s{sLB}')
    k(f'ds_write_b32 v{a0}, v{p+6} offset:{R0 + 60}')
    k('s_mov_b64 exec, -1')
    k(f'v_add_u32 v{a1}, {R3O}, v{vXW}')
    rounds = [(vXW, 0, R0P), (vXW, 64, R0P + 256), (vXW, 128, R0P + 512), (a1, 0, R3P - R3O), (a1, 64, R3P - R3O + 256)]
    for n_, (ad, o, dst) in enumerate(rounds):
        k(f'ds_read2_b32 v[{p+2*n_}:{p+2*n_+1}], v{ad} offset0:{o} offset1:{o+1}')
    for n_, (ad, o, dst) in enumerate(rounds):
        k('s_waitcnt lgkmcnt(4)')
        k(f'v_alignbit_b32 v{p+2*n_}, v{p+2*n_+1}, v{p+2*n_}, 16')
        k(f'ds_write_b32 v{ad}, v{p+2*n_} offset:{dst}')
    O = p + 12
    for q in range(4):
        k(f'ds_read_b128 v[{O+4*q}:{O+4*q+3}], v{vLB16} offset:{1024*q}')
    for q in range(4):
        k(f's_waitcnt lgkmcnt({3-q})')
        k(f'buffer_store_dwordx4 v[{O+4*q}:{O+4*q+3}], v{vPO}, s[{sKL}:{sKL+3}], 0 offen offset:{1024*q}')
    k.stamp_flush(3, 20)
    return 10*KW, nxt

CW = 14928
UB = 0; U0 = 16
WR = 4112
C7B, C9B, F2B = WR, WR + 2080, WR + 4160
C3B, C5B = WR, WR + 3616
U2B = WR + 6720
def conv_role(k, sID):
    k.stamp(0)
    k(f's_load_dwordx2 s[4:5], s[0:1], {KA["Dskip"]}')
    k(f's_load_dwordx2 s[20:21], s[0:1], {KA["ws"]}')
    sWV, sD, sT0, sT1, sLB, sDS = 22, 23, 24, 25, 26, 28
    sUT, sAT, sKL = 32, 36, 40
    vL, vX, vKG, vT, vT2, vT3, vUO = 1, 2, 3, 4, 5, 6, 7
    vK0, vK1, vK2, vK3, vU, vD1, vD2, vD3, vDF, vR4, vC4, vEU, vEO, vLW = range(8, 22)
    FX = 22
    UL01, UL23 = 26, 42
    V = 58
    SV = 128
    KX = 144
    k32 = [UL01 + 4*i for i in range(4)] + [KX + 4*i for i in range(6)]
    k(f'v_lshrrev_b32 v{vT}, 6, v0')
    k(f'v_and_b32 v{vL}, 63, v0')
    k(f'v_readfirstlane_b32 s{sWV}, v{vT}')
    k(f'v_lshlrev_b32 v{vUO}, 4, v{vL}')
    k(f's_mul_i32 s{sD}, s{sID}, 10')
    k(f's_add_u32 s{sD}, s{sD}, s{sWV}')
    k(f's_mul_i32 s{sLB}, s{sWV}, {CW}')
    k(f's_mul_i32 s{sT0}, s{sD}, {UT_PITCH*2}')
    k(f's_add_u32 s{sT0}, s{sT0}, {WS_UT}')
    k(f's_lshr_b32 s{sT1}, s{sD}, 1')
    k(f's_lshl_b32 s{sT1}, s{sT1}, 2')
    k('s_waitcnt lgkmcnt(0)')
    k(f's_load_dword s{sDS+1}, s[4:5], s{sT1}')
    k.srd(sUT, 20, 21, UT_PITCH*2, f's{sT0}')
    for q in range(4):
        for h in range(2):
            r = (UL01 if q < 2 else UL23) + 8*(q % 2) + 4*h
            k(f'buffer_load_dwordx4 v[{r}:{r+3}], v{vUO}, s[{sUT}:{sUT+3}], 0 offen offset:{(UT_PAD - 12 + 512*q + 8*h)*2}')
    k(f's_add_u32 m0, s{sLB}, {U0 - UT_PAD*2 + 65536}' if False else f's_add_u32 s{sT1}, s{sLB}, {U0 + 1024}')
    k(f's_mov_b32 s{sT0}, {UT_PAD*2}')
    k(f's_add_u32 m0, s{sLB}, {U0}')
    k('s_nop 0')
    for q in range(4):
        k(f'buffer_load_dwordx4 v{vUO}, s[{sUT}:{sUT+3}], s{sT0} offen offset:{1024*q} lds')
    k(f's_mov_b32 s{sT0}, {(UT_PAD-14)*2}')
    k(f's_add_u32 m0, s{sLB}, {U2B}')
    k('s_nop 0')
    for q in range(4):
        k(f'buffer_load_dwordx4 v{vUO}, s[{sUT}:{sUT+3}], s{sT0} offen offset:{1024*q} lds')
    k(f's_mul_i32 s{sT0}, s{sD}, {KLP}')
    k(f's_add_u32 s{sT0}, s{sT0}, {WS_KL}')
    k.srd(sKL, 20, 21, KLP, f's{sT0}')
    k(f's_lshl_b32 s{sT0}, s{sD}, 12')
    k(f's_add_u32 s{sT0}, s{sT0}, {WS_AT}')
    k.srd(sAT, 20, 21, 4096, f's{sT0}')
    k(f'v_and_b32 v{vX}, 15, v{vL}')
    k(f'v_lshrrev_b32 v{vKG}, 4, v{vL}')
    k(f'v_add_u32 v{vLW}, s{sLB}, v{vUO}')
    k(f'v_lshlrev_b32 v{vT}, 4, v{vKG}')
    k(f'v_lshl_add_u32 v{vT2}, v{vX}, 1, v{vT}')
    k(f'v_and_b32 v{vEU}, 1, v{vX}')
    k(f'v_mul_u32_u24 v{vEO}, {R0P - 2 - R0}, v{vEU}')
    k(f'v_add_u32 v{vT2}, v{vT2}, v{vEO}')
    k(f'v_sub_u32 v{vK0}, {R0P - 2 + 2*(295-256)}, v{vT2}')
    k(f'v_lshlrev_b32 v{vT2}, 3, v{vX}')
    k(f'v_sub_u32 v{vK1}, v{vT}, v{vT2}')
    k(f'v_add_u32 v{vK1}, {120 + R1O}, v{vK1}')
    k(f'v_lshlrev_b32 v{vT2}, 2, v{vX}')
    k(f'v_sub_u32 v{vK2}, v{vT}, v{vT2}')
    k(f'v_add_u32 v{vK2}, {60 + R2O}, v{vK2}')
    k(f'v_and_b32 v{vT2}, 1, v{vKG}')
    k(f'v_lshrrev_b32 v{vT3}, 1, v{vKG}')
    k(f'v_mul_u32_u24 v{vK3}, {R3E - R3O}, v{vT3}')
    k(f'v_lshl_add_u32 v{vK3}, v{vT2}, 4, v{vK3}')
    k(f'v_lshlrev_b32 v{vR4}, 1, v{vX}')
    k(f'v_sub_u32 v{vK3}, v{vK3}, v{vR4}')
    k(f'v_add_u32 v{vK3}, {R3P - 2 + 30}, v{vK3}')
    k(f'v_mul_u32_u24 v{vEO}, {R3P - 2 - R3O}, v{vEU}')
    k(f'v_sub_u32 v{vK3}, v{vK3}, v{vEO}')
    k(f'v_lshlrev_b32 v{vU}, 5, v{vX}')
    k(f'v_sub_u32 v{vU}, v{vU}, v{vT}')
    k(f'v_add_u32 v{vU}, s{sLB}, v{vU}')
    k(f'v_lshrrev_b32 v{vR4}, 2, v{vX}')
    k(f'v_and_b32 v{vC4}, 3, v{vX}')
    k(f'v_lshlrev_b32 v{vC4}, 3, v{vC4}')
    k(f'v_add_u32 v{vC4}, s{sLB}, v{vC4}')
    k(f'v_lshl_add_u32 v{vD1}, v{vKG}, 3, v{vR4}')
    k(f'v_lshl_add_u32 v{vD2}, v{vD1}, 4, v{vC4}')
    k(f'v_lshl_add_u32 v{vD1}, v{vD1}, 3, v{vC4}')
    k(f'v_lshl_add_u32 v{vD3}, v{vT2}, 3, v{vR4}')
    k(f'v_lshl_add_u32 v{vD3}, v{vD3}, 5, v{vC4}')
    k(f'v_mul_u32_u24 v{vT3}, {(C9B + 32 - 32) - (C7B + 32 - 16)}, v{vT3}')
    k(f'v_add_u32 v{vD3}, v{vT3}, v{vD3}')
    k(f'v_lshl_add_u32 v{vDF}, v{vKG}, 2, v{vR4}')
    k(f'v_lshl_add_u32 v{vDF}, v{vDF}, 5, v{vC4}')
    k(f'v_lshlrev_b32 v{vEO}, 5, v{vX}')
    k(f'v_lshl_add_u32 v{vEO}, v{vKG}, 3, v{vEO}')
    k(f'v_add_u32 v{vEU}, s{sLB}, v{vEO}')
    Z = V
    for r in range(4): k(f'v_mov_b32 v{Z+r}, 0')
    k(f'v_mul_u32_u24 v{vT}, 2080, v{vL}')
    k(f'v_add_u32 v{vT}, {WR - 2080}, v{vT}')
    k(f'v_cmp_eq_u32 vcc, 0, v{vL}')
    k(f'v_mov_b32 v{vT3}, s{sLB}')
    k(f'v_add_u32 v{vT}, s{sLB}, v{vT}')
    k(f'v_cndmask_b32 v{vT}, v{vT}, v{vT3}, vcc')
    k('s_mov_b64 exec, 0xf')
    k(f'ds_write_b128 v{vT}, v[{Z}:{Z+3}]')
    k('s_mov_b64 exec, -1')
    k('s_waitcnt lgkmcnt(0)')
    k(f's_lshl_b32 s{sDS}, s{sDS+1}, 16')
    k(f's_and_b32 s{sDS+1}, s{sDS+1}, 0xffff0000')
    k(f's_bitcmp1_b32 s{sD}, 0')
    k(f's_cselect_b32 s{sDS}, s{sDS+1}, s{sDS}')
    k(f's_mov_b32 s{sDS+1}, s{sDS}')
    Ue = V; Pe = V + 32; PKR = V + 62
    ue = lambda i, c=0: Ue + 2*(i+4) + c
    pe = lambda i, c=0: Pe + 2*(i+4) + c
    ce = lambda i, c=0: ue(i+1, c)
    def add(d, a, b): k(f'v_pk_add_f32 v[{d}:{d+1}], v[{a}:{a+1}], v[{b}:{b+1}]')
    def pack(fn, c, pr):
        for e in range(4):
            k(f'v_cvt_pk_bf16_f32 v{pr+e}, v{fn(2*e, c)}, v{fn(2*e+1, c)}')
    def wr(pr, base, q, nl=64):
        if nl < 64: setexec(k, nl)
        k(f'ds_write_b128 v{vLW}, v[{pr}:{pr+3}] offset:{base + 16 + 1024*q}')
        if nl < 64: k('s_mov_b64 exec, -1')
    def unpack(src, lo, hi):
        for c in range(2):
            for i in range(lo, hi+1):
                d = src + 8*c + (i+4)//2
                if (i+4) % 2 == 0: k(f'v_lshlrev_b32 v{ue(i,c)}, 16, v{d}')
                else: k(f'v_and_b32 v{ue(i,c)}, 0xffff0000, v{d}')
    k('s_waitcnt vmcnt(12)')
    k.stamp(1)
    unpack(UL01, -4, 11)
    def kload(r, addr, off): k(f'buffer_load_dwordx4 v[{r}:{r+3}], v{addr}, s[{sKL}:{sKL+3}], 0 offen offset:{off}')
    k(f'v_mov_b32 v{vT}, {R2E + 64}')
    k(f'buffer_load_ushort v{FX+2}, v{vT}, s[{sKL}:{sKL+3}], 0 offen')
    for c in range(4): kload(k32[c], vK3, 32*c)
    for li in range(2):
        for c in range(3): kload(k32[4 + 3*li + c], vK2, (R2E - R2O)*li + 64*c)
    for i in range(-4, 11): add(pe(i), ue(i), ue(i+1))
    for c in range(2):
        pack(pe, c, PKR + 4*c); wr(PKR + 4*c, F2B, c)
    for i in range(-3, 8): add(ce(i), pe(i-1), ue(i+1))
    for c in range(2): pack(ce, c, SV + 4*c)
    for i in range(7, -3, -1): add(ce(i), ce(i-1), pe(i+1))
    for c in range(2): pack(ce, c, SV + 8 + 4*c)
    for i in range(7, -2, -1): add(ce(i), ce(i-1), pe(i+2))
    for c in range(2):
        pack(ce, c, PKR + 4*c); wr(PKR + 4*c, C7B, c)
    for i in range(7, -1, -1): add(ce(i), ce(i-1), pe(i+3))
    for c in range(2):
        pack(ce, c, PKR + 4*c); wr(PKR + 4*c, C9B, c)
    k('s_waitcnt vmcnt(19)')
    unpack(UL23, -2, 9)
    for i in range(-2, 9): add(pe(i), ue(i), ue(i+1))
    pack(pe, 0, PKR); wr(PKR, F2B, 2, 1)
    for i in range(-1, 8): add(ce(i), pe(i-1), ue(i+1))
    S2 = UL23
    for c in range(2): pack(ce, c, S2 + 4*c)
    for i in range(7, -1, -1): add(ce(i), ce(i-1), pe(i+1))
    pack(ce, 0, S2 + 8)
    k.stamp(2)
    ACC = V; RG = V + 32
    for r in range(32): k(f'v_mov_b32 v{ACC+r}, 0')
    k(f'v_lshlrev_b32 v{vT2}, 2, v{vKG}')
    k(f'v_sub_u32 v{vT2}, v{vX}, v{vT2}')
    k('s_waitcnt vmcnt(0)')
    k(f'v_lshlrev_b32 v{FX+3}, 16, v{FX+2}')
    for half in range(2):
        k(f'v_cmp_eq_u32 vcc, {2*half}, v{vT2}')
        k(f'v_mov_b32 v{FX+half}, 0')
        k(f'v_cmp_eq_u32 s[{sT0}:{sT0+1}], {2*half+1}, v{vT2}')
        k(f'v_cndmask_b32 v{FX+half}, v{FX+half}, v{FX+2}, vcc')
        k('s_nop 0')
        k(f'v_cndmask_b32 v{FX+half}, v{FX+half}, v{FX+3}, s[{sT0}:{sT0+1}]')
    acc = lambda T: f'v[{ACC+4*T}:{ACC+4*T+3}]'
    def M(T, a, b): return f'v_mfma_f32_16x16x32_bf16 {acc(T)}, v[{a}:{a+3}], v[{b}:{b+3}], {acc(T)}'
    def trp(addr, off, hstep):
        return lambda b: [f'ds_read_b64_tr_b16 v[{b}:{b+1}], v{addr} offset:{off}',
                          f'ds_read_b64_tr_b16 v[{b+2}:{b+3}], v{addr} offset:{off + hstep}']
    items = []
    for cp in range(4):
        items.append((trp(vD3, C7B + 32 - 16 + 512*cp, 128),
                      lambda b, cp=cp: [M(4 + cp + n, b, k32[3 - n]) for n in range(4 - cp)]))
    for T in range(4, 8):
        items.append((lambda b, T=T: [f'ds_read_b64_tr_b16 v[{b}:{b+1}], v{vDF} offset:{F2B + 32 - 8 + 512*(T-4)}'],
                      lambda b, T=T: [f'v_mfma_f32_16x16x16_bf16 {acc(T)}, v[{b}:{b+1}], v[{FX}:{FX+1}], {acc(T)}']))
    k('s_waitcnt lgkmcnt(0)')
    for i, it in enumerate(items):
        for x in it[0](RG + 4*i): k(x)
    k(f'v_mov_b32 v{vT}, s{sLB}')
    for r in range(4): k(f'v_mov_b32 v{PKR+r}, 0')
    k(f'ds_write_b128 v{vT}, v[{PKR}:{PKR+3}] offset:{C3B}')
    k(f'ds_write_b128 v{vT}, v[{PKR}:{PKR+3}] offset:{C5B}')
    wr(SV, C3B, 0); wr(SV+4, C3B, 1); wr(S2, C3B, 2); wr(S2+4, C3B, 3, 33)
    wr(SV+8, C5B, 0); wr(SV+12, C5B, 1); wr(S2+8, C5B, 2)
    k('s_waitcnt lgkmcnt(9)')
    for i, it in enumerate(items):
        for x in it[1](RG + 4*i): k(x)
    k0 = [SV + 4*i for i in range(4)] + [UL23 + 4*i for i in range(4)] + [UL01]
    k('s_waitcnt lgkmcnt(0)')
    for sg in range(9): kload(k0[sg], vK0, 64*(8-sg))
    items = []
    for cp in range(6):
        for li, base in enumerate((C3B + 32 - 24, C5B + 32 - 32)):
            items.append((trp(vD2, base + 512*cp, 64),
                          lambda b, cp=cp, li=li: [M(cp + 2 + n, b, k32[4 + 3*li + 2 - n]) for n in range(3) if cp + 2 + n <= 7]))
    stream(k, items, RG, 8, 6)
    k.stamp(3)
    k1 = [KX + 4*i for i in range(6)] + [UL01 + 4, UL01 + 8]
    k('s_waitcnt vmcnt(0)')
    for li in range(2):
        for c in range(4): kload(k1[4*li + c], vK1, (R1E - R1O)*li + 64*c)
    k(f'v_mov_b32 v{vT3}, s{sLB}')
    items = []
    for phi in range(-7, 57):
        T = -((-phi) // 8)
        def mm(b, phi=phi, T=T):
            o = [M(T, k0[8*T - phi], b)]
            if phi % 8 == 0 and T + 1 <= 7: o.append(M(T + 1, k0[8], b))
            return o
        if phi <= 0:
            off = U0 + 16 + 64*phi
            items.append((lambda b, off=off: [f'v_add_u32 v{vT2}, {off}, v{vU}', f'v_max_i32 v{vT2}, v{vT3}, v{vT2}', f'ds_read_b128 v[{b}:{b+3}], v{vT2}'], mm))
        else:
            items.append((lambda b, phi=phi: [f'ds_read_b128 v[{b}:{b+3}], v{vU} offset:{U0 + 16 + 64*phi}'], mm))
    stream(k, items, RG, 8, 6)
    k.stamp(4)
    k('s_waitcnt vmcnt(0)')
    items = []
    for cp in range(14):
        for li, base in enumerate((U2B, C3B + 32 - 32)):
            T1 = cp//2 + 1
            def mm(b, cp=cp, li=li, T1=T1):
                o = [M(T1, b, k1[4*li + cp % 2 + 2])]
                if T1 + 1 <= 7: o.append(M(T1 + 1, b, k1[4*li + cp % 2]))
                return o
            items.append((trp(vD1, base + 256*cp, 32), mm))
    stream(k, items, RG, 8, 6)
    k.stamp(5)
    UE = SV
    for T in range(8):
        k(f'ds_read_b64 v[{UE+2*T}:{UE+2*T+1}], v{vEU} offset:{U0 + 512*T}')
    for T in range(8):
        a = ACC + 4*T
        t = RG + 8*(T % 4)
        k(f's_waitcnt lgkmcnt({7-T})')
        unpack4(k, t, UE + 2*T)
        for r in (0, 2):
            k(f'v_pk_mul_f32 v[{t+r}:{t+r+1}], v[{t+r}:{t+r+1}], s[{sDS}:{sDS+1}]')
        rnd_unpack(k, a, t+4)
        rnd_unpack(k, t, t+6)
        for r in (0, 2):
            k(f'v_pk_add_f32 v[{a+r}:{a+r+1}], v[{a+r}:{a+r+1}], v[{t+r}:{t+r+1}]')
        k(f'v_cvt_pk_bf16_f32 v{t+4}, v{a}, v{a+1}')
        k(f'v_cvt_pk_bf16_f32 v{t+5}, v{a+2}, v{a+3}')
        k(f'buffer_store_dwordx2 v[{t+4}:{t+5}], v{vEO}, s[{sAT}:{sAT+3}], 0 offen offset:{512*T}')
    k.stamp_flush(6, 20)
    return 10*CW, 168

if __name__ == '__main__':
    import sys
    st = len(sys.argv) > 1
    ka = KB('ka'); ka.stamps = st and sys.argv[1] == 'a'
    ka('s_cmp_ge_u32 s2, 64'); ka('s_cbranch_scc1 ka_end')
    l1, n1 = kgen_role(ka, 2)
    ka.label('ka_end'); ka('s_endpgm')
    kb = KB('kb'); kb.stamps = st and sys.argv[1] == 'b'
    kb('s_cmp_ge_u32 s2, 64'); kb('s_cbranch_scc1 kb_end')
    l2, n2 = conv_role(kb, 2)
    kb.label('kb_end'); kb('s_endpgm')
    print(l1, n1, l2, n2)
    open('gs2.s', 'w').write(wrap('ssm2 test', [('ka_kernel', 64, 640, l1), ('kb_kernel', 64, 640, l2)], [('ka_kernel', ka.text(), 168, 100), ('kb_kernel', kb.text(), 168, 100)]))
```

```python
import sys
from asmlib import *
from layout import *
import gemm1b, gemm2b, gemm3, ssm2, gate

HEADER = open('gated_mix__ssm_conv_s4__mixer_gmlp__prompt.s.ref').read().split('\n')
HEADER = [l[2:] for l in HEADER if l.startswith('; ') and '@launch' not in l and 'Override' not in l and 'grid=ceil' not in l]

def aux_dispatch(k, name, nact):
    k('s_cmp_ge_u32 s2, 256'); k(f's_cbranch_scc1 {name}_end')
    k('s_sub_u32 s3, s2, 192')
    k('v_lshrrev_b32 v1, 6, v0')
    k('s_nop 0')
    k('v_readfirstlane_b32 s22, v1')
    k('s_nop 3')
    k(f's_cmp_ge_u32 s22, {nact}'); k(f's_cbranch_scc1 {name}_x')

def build(path, st=0):
    k1 = KB('k1'); k1.stamps = st == 1
    k1('s_cmp_ge_u32 s2, 192'); k1('s_cbranch_scc1 k1_aux')
    lds1, nv1 = gemm1b.gemm1b_role(k1)
    k1('s_endpgm')
    k1.label('k1_aux')
    aux_dispatch(k1, 'k1', 10)
    lds1b, nv1b = ssm2.kgen_role(k1, 3)
    k1.label('k1_x'); k1.label('k1_end'); k1('s_endpgm')
    k2 = KB('k2'); k2.stamps = st == 2
    k2('s_cmp_ge_u32 s2, 192'); k2('s_cbranch_scc1 k2_aux')
    lds2, nv2 = gemm2b.gemm2b_role(k2)
    k2('s_endpgm')
    k2.label('k2_aux')
    aux_dispatch(k2, 'k2', 10)
    lds2b, nv2b = ssm2.conv_role(k2, 3)
    k2('s_endpgm')
    k2.label('k2_x')
    k2('s_lshl_b32 s3, s3, 1'); k2('s_add_u32 s3, s3, s22'); k2('s_sub_u32 s3, s3, 10')
    gate.gate_role(k2, 3, 16, 0)
    k2.label('k2_end'); k2('s_endpgm')
    k3 = KB('k3'); k3.stamps = st == 3
    k3('s_cmp_ge_u32 s2, 160'); k3('s_cbranch_scc1 k3_end')
    lds3, nv3 = gemm3.gemm3_role(k3)
    k3.label('k3_end'); k3('s_endpgm')
    launches = [('gm1_kernel', 256, 768, max(lds1, lds1b)), ('gm2_kernel', 256, 768, max(lds2, lds2b)), ('gm3_kernel', 160, 512, lds3)]
    kernels = [('gm1_kernel', k1.text(), 168, 100), ('gm2_kernel', k2.text(), 168, 100), ('gm3_kernel', k3.text(), 168 if st == 3 else nv3, 100)]
    open(path, 'w').write(wrap('\n'.join(HEADER), launches, kernels))

if __name__ == '__main__':
    build('gated_mix__ssm_conv_s4__mixer_gmlp__prompt.s')
    build('full.s')
    for st in (1, 2, 3): build(f'full_s{st}.s', st)
```

```python
from asmlib import *
from layout import *
from gemm3 import rnd_unpack, unpack4
from gemm1 import f2u, LOG2E, GC1, GC2, allreduce16

def gelu_pk(k, a, n, t, sC2, vC1):
    for p in range(0, n, 2):
        k(f'v_pk_mul_f32 v[{t+p}:{t+p+1}], v[{a+p}:{a+p+1}], v[{a+p}:{a+p+1}]')
    for p in range(0, n, 2):
        k(f'v_pk_fma_f32 v[{t+p}:{t+p+1}], v[{t+p}:{t+p+1}], s[{sC2}:{sC2+1}], v[{vC1}:{vC1+1}]')
    for p in range(0, n, 2):
        k(f'v_pk_mul_f32 v[{t+p}:{t+p+1}], v[{t+p}:{t+p+1}], v[{a+p}:{a+p+1}]')
    for p in range(n):
        k(f'v_exp_f32 v{t+p}, v{t+p}')
    for p in range(0, n, 2):
        k(f'v_pk_add_f32 v[{t+p}:{t+p+1}], v[{t+p}:{t+p+1}], 1.0 op_sel_hi:[1,0]')
    for p in range(n):
        k(f'v_rcp_f32 v{t+p}, v{t+p}')
    for p in range(0, n, 2):
        k(f'v_pk_mul_f32 v[{a+p}:{a+p+1}], v[{a+p}:{a+p+1}], v[{t+p}:{t+p+1}]')

FLAGSTEP = 14
ROT = 0
LPF = 2
MAP83 = 1
FRONT = 0
RPM = 2
NSIDE = 14
def gemm1b_role(k, NS=5):
    STG = 24576
    XCH = NS*STG
    NKS = 20
    k.stamp(0)
    k(f's_load_dwordx2 s[4:5], s[0:1], {KA["u"]}')
    k(f's_load_dwordx2 s[6:7], s[0:1], {KA["w_in"]}')
    k(f's_load_dwordx4 s[12:15], s[0:1], {KA["dbg"]}')
    sWSp = 14
    sX, sW, sZ1, sZ2, sST, sUT, sDB = 16, 20, 24, 28, 32, 36, 40
    sRB, sCB, sWV, sT0, sT1, sT2, sKGP, sKX, sKW, sMX, sMW, sJ, sSTG = range(44, 57)
    sC2 = 58
    sM1, sM2, sM3, sEX, sL12 = 60, 62, 64, 66, 68
    vL, vT, vT2, vT3, vT4, vR, vKG = 1, 2, 3, 4, 5, 6, 7
    k(f'v_lshrrev_b32 v{vT}, 6, v0')
    k(f'v_and_b32 v{vL}, 63, v0')
    k(f'v_readfirstlane_b32 s{sWV}, v{vT}')
    k(f's_and_b32 s{sT0}, s2, 7')
    k(f's_lshr_b32 s{sT1}, s2, 3')
    if not MAP83:
        k(f's_lshl_b32 s{sRB}, s{sT0}, 2')
        k(f's_and_b32 s{sT0}, s{sT1}, 3')
        k(f's_add_u32 s{sRB}, s{sRB}, s{sT0}')
        k(f's_lshr_b32 s{sCB}, s{sT1}, 2')
    else:
        k(f's_lshr_b32 s{sRB}, s{sT0}, 1')
        k(f's_lshl_b32 s{sRB}, s{sRB}, 3')
        k(f's_and_b32 s{sCB}, s{sT1}, 7')
        k(f's_add_u32 s{sRB}, s{sRB}, s{sCB}')
        k(f's_and_b32 s{sT0}, s{sT0}, 1')
        k(f's_mul_i32 s{sT0}, s{sT0}, 3')
        k(f's_lshr_b32 s{sCB}, s{sT1}, 3')
        k(f's_add_u32 s{sCB}, s{sCB}, s{sT0}')
    lcons = k.newlabel('cons')
    k(f's_cmp_lt_u32 s{sWV}, 8')
    k(f's_cbranch_scc1 {lcons}')
    vDX, vDW = 8, 12
    vUA, vUS = 20, 44
    UR = 24
    ZR = 40
    vA4 = 48
    k(f's_sub_u32 s{sWV}, s{sWV}, 8')
    k(f'v_lshrrev_b32 v{vT}, 3, v{vL}')
    k(f'v_and_b32 v{vT2}, 7, v{vL}')
    k(f'v_lshrrev_b32 v{vT3}, 1, v{vT}')
    k(f'v_xor_b32 v{vT3}, v{vT2}, v{vT3}')
    k(f'v_lshlrev_b32 v{vT3}, 4, v{vT3}')
    k(f's_lshl_b32 s{sT0}, s{sWV}, 4')
    k(f'v_add_u32 v{vT4}, s{sT0}, v{vT}')
    k(f'v_mul_u32_u24 v{vT4}, 1280, v{vT4}')
    k(f'v_add_u32 v{vT4}, 4096, v{vT4}')
    k(f'v_add_u32 v{vDX}, v{vT4}, v{vT3}')
    k(f'v_xor_b32 v{vT3}, 64, v{vT3}')
    k(f'v_add_u32 v{vDX+1}, v{vT4}, v{vT3}')
    k(f'v_add_u32 v{vDX+1}, {8*1280 - 1024}, v{vDX+1}')
    k(f'v_lshrrev_b32 v{vT}, 4, v{vL}')
    k(f'v_and_b32 v{vT2}, 15, v{vL}')
    k(f'v_lshlrev_b32 v{vT3}, 1, v{vT}')
    k(f'v_xor_b32 v{vT3}, v{vT2}, v{vT3}')
    k(f'v_lshlrev_b32 v{vT3}, 4, v{vT3}')
    k(f's_lshl_b32 s{sT0}, s{sWV}, 4')
    k(f'v_add_u32 v{vT4}, s{sT0}, v{vT}')
    k(f'v_mul_u32_u24 v{vT4}, 3072, v{vT4}')
    k(f'v_add_u32 v{vT}, v{vT4}, v{vT3}')
    k(f'v_xor_b32 v{vT3}, 128, v{vT3}')
    k(f'v_add_u32 v{vT2}, v{vT4}, v{vT3}')
    for i in range(4):
        k(f'v_add_u32 v{vDW+i}, {i*4*3072 + 4096 - 1024*i}, v{vT2 if (i >> 1) & 1 else vT}')
    k(f's_lshl_b32 s{sMX}, s{sWV}, 11')
    k(f's_lshl_b32 s{sMW}, s{sWV}, 12')
    k(f's_add_u32 s{sMW}, s{sMW}, 8192')
    k('s_waitcnt lgkmcnt(0)')
    k(f's_mul_i32 s{sT0}, s{sRB}, {64*1280}')
    k(f's_sub_u32 s4, s4, 4096')
    k(f's_subb_u32 s5, s5, 0')
    k.srd(sX, 4, 5, 64*1280 + 4096, f's{sT0}')
    k(f's_lshl_b32 s{sT0}, s{sCB}, 8')
    k(f's_sub_u32 s6, s6, 4096')
    k(f's_subb_u32 s7, s7, 0')
    k.srd(sW, 6, 7, 639*3072 + 1536 + 256 + 4096, f's{sT0}')
    def group(g):
        st = (g % NS)*STG
        kb = g % 10
        k(f's_add_u32 m0, s{sMX}, {st}')
        k(f's_movk_i32 s{sKX}, {kb*128}')
        k(f'buffer_load_dwordx4 v{vDX}, s[{sX}:{sX+3}], s{sKX} offen lds')
        k(f's_mov_b32 s{sKW}, {kb*64*3072 + (1536 if g < 10 else 0)}')
        k(f'buffer_load_dwordx4 v{vDX+1}, s[{sX}:{sX+3}], s{sKX} offen offset:1024 lds')
        k(f's_add_u32 m0, s{sMW}, {st}')
        k('s_nop 0')
        for i in range(4):
            k(f'buffer_load_dwordx4 v{vDW+i}, s[{sW}:{sW+3}], s{sKW} offen offset:{1024*i} lds')
    group(0); group(1)
    k(f'v_and_b32 v{vR}, 15, v{vL}')
    k(f'v_lshrrev_b32 v{vKG}, 4, v{vL}')
    k(f'v_lshrrev_b32 v{vT}, 2, v{vR}')
    k(f'v_and_b32 v{vT4}, 1, v{vKG}')
    k(f'v_lshl_add_u32 v{vT2}, v{vT4}, 3, v{vT}')
    k(f'v_lshrrev_b32 v{vT3}, 1, v{vT2}')
    k(f'v_and_b32 v{vT4}, 3, v{vL}')
    k(f'v_lshrrev_b32 v{vT}, 1, v{vT4}')
    k(f'v_and_b32 v{vUS}, 2, v{vKG}')
    k(f'v_or_b32 v{vT}, v{vT}, v{vUS}')
    k(f'v_xor_b32 v{vT}, v{vT}, v{vT3}')
    k(f'v_lshlrev_b32 v{vT}, 4, v{vT}')
    k(f'v_lshl_add_u32 v{vT}, v{vT2}, 7, v{vT}')
    k(f'v_and_b32 v{vT4}, 1, v{vT4}')
    k(f'v_lshl_add_u32 v{vUA}, v{vT4}, 3, v{vT}')
    k(f'v_add_u32 v{vUA}, s{sMX}, v{vUA}')
    k(f'v_lshl_add_u32 v{vT}, v{vUS}, 3, v{vR}')
    k(f'v_mul_u32_u24 v{vT}, {UT_PITCH*2}, v{vT}')
    k(f'v_and_b32 v{vT4}, 1, v{vKG}')
    k(f'v_lshl_add_u32 v{vUS}, v{vT4}, 4, v{vT}')
    k(f'v_add_u32 v{vUS+1}, {32*UT_PITCH*2}, v{vUS}')
    for r in range(4): k(f'v_mov_b32 v{ZR+r}, 0')
    k.srd(sUT, sWSp, sWSp+1, 640*UT_PITCH*2, WS_UT)
    k.srd(sDB, 12, 13, 256)
    k('s_waitcnt vmcnt(6)')
    k('s_barrier')
    for g in range(2, NS): group(g)
    lut = k.newlabel('ut')
    sRET = 70
    for j in range(NKS-1):
        lastg = min(j - 1 + NS, NKS - 1)
        k(f's_waitcnt vmcnt({6*max(0, lastg-(j+1))})')
        k('s_barrier')
        if j < 10:
            lsk = k.newlabel('lsk')
            k(f's_cmp_lg_u32 s{sCB}, {j if j < 6 else j - 6}')
            k(f's_cbranch_scc1 {lsk}')
            k(f's_mov_b32 s{sSTG}, {(j % NS)*STG}')
            k(f's_mov_b32 s{sJ}, {j*64*UT_PITCH*2}')
            k(f's_call_b64 s[{sRET}:{sRET+1}], {lut}')
            k.label(lsk)
        if j == FLAGSTEP:
            lnf = k.newlabel('lnf')
            k(f's_cmp_lg_u32 s{sWV}, 0')
            k(f's_cbranch_scc1 {lnf}')
            k(f'v_mov_b32 v{vT}, 1')
            k(f's_lshl_b32 s{sT0}, s{sRB}, 3')
            k(f's_add_u32 s{sT0}, s{sT0}, s{sCB}')
            k(f'v_mov_b32 v{vT2}, s{sT0}')
            k('s_mov_b64 exec, 1')
            k(f'buffer_store_byte v{vT}, v{vT2}, s[{sDB}:{sDB+3}], 0 offen sc1')
            k('s_mov_b64 exec, -1')
            k.label(lnf)
        if j + NS < NKS: group(j + NS)
    lend = k.newlabel('lend')
    k(f's_cmp_lg_u32 s{sWV}, 0')
    k(f's_cbranch_scc1 {lend}')
    k(f's_lshl_b32 s{sT0}, s{sRB}, 3')
    k(f'v_mov_b32 v{vT3}, s{sT0}')
    lp = k.newlabel('poll'); lpd = k.newlabel('polld')
    k.label(lp)
    k(f'buffer_load_dwordx2 v[{vT}:{vT+1}], v{vT3}, s[{sDB}:{sDB+3}], 0 offen sc1')
    k('s_waitcnt vmcnt(0)')
    k(f'v_or_b32 v{vT+1}, 0x01010000, v{vT+1}')
    k(f'v_and_b32 v{vT}, v{vT}, v{vT+1}')
    k('s_nop 0')
    k(f'v_readfirstlane_b32 s{sT0}, v{vT}')
    k(f's_cmp_eq_u32 s{sT0}, 0x01010101')
    k(f's_cbranch_scc1 {lpd}')
    k('s_sleep 1')
    k(f's_branch {lp}')
    k.label(lpd)
    k('s_barrier')
    k.label(lend)
    k('s_endpgm')
    k.label(lut)
    k(f'v_add_u32 v{vA4}, s{sSTG}, v{vUA}')
    k(f'v_xor_b32 v{vA4+1}, 32, v{vA4}')
    k(f'v_xor_b32 v{vA4+2}, 64, v{vA4}')
    k(f'v_xor_b32 v{vA4+3}, 96, v{vA4}')
    for i in range(2):
        r = UR + 4*i
        k(f'ds_read_b64_tr_b16 v[{r}:{r+1}], v{vA4+2*i}')
        k(f'ds_read_b64_tr_b16 v[{r+2}:{r+3}], v{vA4+2*i+1} offset:512')
    k(f's_lshl_b32 s{sT2}, s{sWV}, 5')
    k(f's_add_u32 s{sT0}, s{sJ}, s{sT2}')
    k(f's_lshl_b32 s{sT1}, s{sRB}, 7')
    k(f's_add_u32 s{sT1}, s{sT1}, {UT_PAD*2}')
    k(f's_add_u32 s{sT1}, s{sT1}, s{sT0}')
    k(f's_lshr_b32 s{sT2}, s{sWV}, 1')
    k(f's_or_b32 s{sT2}, s{sRB}, s{sT2}')
    k(f's_cmp_eq_u32 s{sT2}, 0')
    k(f's_cselect_b32 s{sT0}, s{sT0}, 0x7f000000')
    k('s_waitcnt lgkmcnt(0)')
    for i in range(2):
        r = UR + 4*i
        k(f'buffer_store_dwordx4 v[{r}:{r+3}], v{vUS+i}, s[{sUT}:{sUT+3}], s{sT1} offen')
        k(f'buffer_store_dwordx4 v[{ZR}:{ZR+3}], v{vUS+i}, s[{sUT}:{sUT+3}], s{sT0} offen')
    k(f's_setpc_b64 s[{sRET}:{sRET+1}]')
    k.label(lcons)
    NSET = (NS + 1) // 2
    vXA = 8
    vWA = vXA + NSET
    vXW = vWA + 4*NSET; vXR = vXW + 1
    vZ2O, vZ1O, vSTW, vSTR, vW64 = vXR+1, vXR+2, vXR+3, vXR+4, vXR+5
    vC1 = vW64 + 1; vC1 += vC1 % 2
    ACC2 = vC1 + 2; ACC2 += (-ACC2) % 4
    ACC1 = ACC2 + 32
    FR = ACC1 + 32
    TMP = FR + 48
    NV = TMP + 24
    assert NV <= 168, NV
    print('NV', NV)
    k(f's_lshr_b32 s{sKGP}, s{sWV}, 2')
    k(f'v_and_b32 v{vR}, 15, v{vL}')
    k(f'v_lshrrev_b32 v{vKG}, 4, v{vL}')
    k(f'v_lshrrev_b32 v{vT}, 1, v{vR}')
    k(f'v_xor_b32 v{vT}, v{vT}, v{vKG}')
    k(f's_lshl_b32 s{sT0}, s{sKGP}, 2')
    k(f'v_xor_b32 v{vT}, s{sT0}, v{vT}')
    k(f'v_lshlrev_b32 v{vT}, 4, v{vT}')
    k(f'v_lshl_add_u32 v{vT}, v{vR}, 7, v{vT}')
    k(f's_and_b32 s{sT0}, s{sWV}, 1')
    k(f's_lshl_b32 s{sT0}, s{sT0}, 12')
    k(f'v_add_u32 v{vXA}, s{sT0}, v{vT}')
    k(f'v_lshrrev_b32 v{vT}, 2, v{vR}')
    k(f'v_lshl_add_u32 v{vT2}, v{vKG}, 3, v{vT}')
    k(f's_lshl_b32 s{sT0}, s{sKGP}, 5')
    k(f'v_add_u32 v{vT2}, s{sT0}, v{vT2}')
    k(f'v_lshlrev_b32 v{vT2}, 8, v{vT2}')
    k(f'v_and_b32 v{vT3}, 3, v{vL}')
    k(f'v_lshl_add_u32 v{vT2}, v{vT3}, 3, v{vT2}')
    k(f'v_and_b32 v{vT3}, 1, v{vKG}')
    k(f'v_lshl_add_u32 v{vT}, v{vT3}, 2, v{vT}')
    k(f's_lshr_b32 s{sT1}, s{sWV}, 1')
    k(f's_and_b32 s{sT1}, s{sT1}, 1')
    k(f's_lshl_b32 s{sT0}, s{sT1}, 2')
    k(f'v_xor_b32 v{vT}, s{sT0}, v{vT}')
    k(f'v_lshl_add_u32 v{vT2}, v{vT}, 5, v{vT2}')
    k(f'v_add_u32 v{vWA}, 8192, v{vT2}')
    for j in range(1, 4):
        k(f'v_xor_b32 v{vWA+j}, {32*j}, v{vWA}')
    for st in range(1, NSET):
        k(f'v_add_u32 v{vXA+st}, {2*STG*st}, v{vXA}')
        for j in range(4):
            k(f'v_add_u32 v{vWA+4*st+j}, {2*STG*st}, v{vWA+j}')
    k(f'v_lshlrev_b32 v{vT}, 4, v{vL}')
    k(f's_lshl_b32 s{sT0}, s{sWV}, 12')
    k(f's_add_u32 s{sT0}, s{sT0}, {XCH}')
    k(f'v_add_u32 v{vXW}, s{sT0}, v{vT}')
    k(f'v_xor_b32 v{vXR}, {4*4096}, v{vXW}')
    assert XCH % 32768 == 0 or True
    k(f's_xor_b32 s{sT0}, s{sWV}, 4')
    k(f's_lshl_b32 s{sT0}, s{sT0}, 12')
    k(f's_add_u32 s{sT0}, s{sT0}, {XCH}')
    k(f'v_add_u32 v{vXR}, s{sT0}, v{vT}')
    k(f's_and_b32 s{sT0}, s{sWV}, 1')
    k(f's_lshl_b32 s{sT0}, s{sT0}, 5')
    k(f's_lshl_b32 s{sT2}, s{sKGP}, 4')
    k(f's_add_u32 s{sT0}, s{sT0}, s{sT2}')
    k(f's_lshl_b32 s{sT1}, s{sT1}, 6')
    k(f'v_add_u32 v{vT}, s{sT1}, v{vR}')
    k(f'v_lshlrev_b32 v{vT}, 12, v{vT}')
    k(f'v_lshl_add_u32 v{vT}, v{vKG}, 3, v{vT}')
    k(f's_lshl_b32 s{sT2}, s{sT0}, 1')
    k(f'v_add_u32 v{vZ2O}, s{sT2}, v{vT}')
    k(f'v_add_u32 v{vT}, s{sT0}, v{vR}')
    k(f'v_mul_u32_u24 v{vT}, 1536, v{vT}')
    k(f'v_and_b32 v{vT2}, 1, v{vKG}')
    k(f'v_lshl_add_u32 v{vT}, v{vT2}, 5, v{vT}')
    k(f'v_lshrrev_b32 v{vT2}, 1, v{vKG}')
    k(f'v_lshl_add_u32 v{vT}, v{vT2}, 4, v{vT}')
    k(f's_lshl_b32 s{sT2}, s{sT1}, 1')
    k(f'v_add_u32 v{vZ1O}, s{sT2}, v{vT}')
    k(f'v_lshl_add_u32 v{vT}, v{vKG}, 2, v{vR}')
    k(f'v_add_u32 v{vT}, s{sT0}, v{vT}')
    k(f'v_lshlrev_b32 v{vT}, 3, v{vT}')
    k(f's_lshr_b32 s{sT1}, s{sT1}, 6')
    k(f's_lshl_b32 s{sT2}, s{sCB}, 1')
    k(f's_add_u32 s{sT1}, s{sT1}, s{sT2}')
    k(f's_lshl_b32 s{sT1}, s{sT1}, 9')
    k(f'v_add_u32 v{vSTW}, s{sT1}, v{vT}')
    k(f'v_lshlrev_b32 v{vT}, 9, v{vR}')
    k(f'v_lshl_add_u32 v{vT}, v{vKG}, 5, v{vT}')
    k(f's_lshl_b32 s{sT2}, s{sT0}, 3')
    k(f'v_add_u32 v{vSTR}, s{sT2}, v{vT}')
    k(f'v_cmp_eq_u32 s[{sM1}:{sM1+1}], 1, v{vR}')
    k(f'v_cmp_eq_u32 s[{sM2}:{sM2+1}], 2, v{vR}')
    k(f'v_cmp_eq_u32 s[{sM3}:{sM3+1}], 3, v{vR}')
    k(f'v_cmp_gt_u32 s[{sEX}:{sEX+1}], 4, v{vR}')
    k(f'v_cmp_gt_u32 s[{sL12}:{sL12+1}], 12, v{vR}')
    k(f'v_mov_b32 v{vC1}, {hex(f2u(GC1))}')
    k(f'v_mov_b32 v{vC1+1}, {hex(f2u(GC1))}')
    k(f'v_mov_b32 v{vT}, 0x42800000')
    k(f'v_cndmask_b32 v{vW64}, 0, v{vT}, s[{sL12}:{sL12+1}]')
    k(f's_mov_b32 s{sC2}, {hex(f2u(GC2))}')
    k(f's_mov_b32 s{sC2+1}, {hex(f2u(GC2))}')
    if LPF == 2:
        k('s_waitcnt lgkmcnt(0)')
        k(f's_lshl_b32 s{sT0}, s{sCB}, 8')
        k.srd(sX, 6, 7, 639*3072 + 1536 + 256, f's{sT0}')
        k(f's_mul_i32 s{sT0}, s{sRB}, {64*1280}')
        k.srd(sW, 4, 5, 64*1280, f's{sT0}')
        k(f'v_lshrrev_b32 v{vT}, 4, v{vL}')
        k(f'v_mul_u32_u24 v{vT}, 3072, v{vT}')
        k(f'v_lshl_add_u32 v{vT}, v{vR}, 4, v{vT}')
        k(f's_and_b32 s{sT0}, s{sRB}, 7')
        k(f's_mul_i32 s{sT0}, s{sT0}, {80*3072}')
        k(f's_and_b32 s{sT1}, s{sWV}, 3')
        k(f's_mul_i32 s{sT1}, s{sT1}, {20*3072}')
        k(f's_add_u32 s{sT0}, s{sT0}, s{sT1}')
        k(f's_cmp_lt_u32 s{sWV}, 4')
        k(f's_cselect_b32 s{sT1}, 1536, 0')
        k(f's_add_u32 s{sT0}, s{sT0}, s{sT1}')
        for q in range(5):
            k(f'buffer_load_dwordx4 v[{TMP+20}:{TMP+23}], v{vT}, s[{sX}:{sX+3}], s{sT0} offen')
            if q < 4: k(f's_add_u32 s{sT0}, s{sT0}, {4*3072}')
        k(f's_cmp_ge_u32 s{sCB}, 3')
        k(f's_cselect_b32 s{sT1}, 3, 0')
        k(f's_sub_u32 s{sT1}, s{sCB}, s{sT1}')
        k(f's_lshl_b32 s{sT1}, s{sT1}, 3')
        k(f's_add_u32 s{sT1}, s{sT1}, s{sWV}')
        k(f's_mul_i32 s{sT1}, s{sT1}, 3456')
        k(f'v_lshlrev_b32 v{vT}, 4, v{vL}')
        for q in range(4):
            if q == 3: k('s_mov_b64 exec, 0xffffff')
            k(f'buffer_load_dwordx4 v[{TMP+20}:{TMP+23}], v{vT}, s[{sW}:{sW+3}], s{sT1} offen offset:{1024*q}')
        k('s_mov_b64 exec, -1')
    if LPF == 1:
        k('s_waitcnt lgkmcnt(0)')
        k(f's_lshl_b32 s{sT0}, s2, 3')
        k(f's_add_u32 s{sT0}, s{sT0}, s{sWV}')
        k(f's_mul_i32 s{sT1}, s{sT0}, 1280')
        k.srd(sX, 6, 7, 640*3072)
        k.srd(sW, 4, 5, 2048*1280)
        k(f'v_lshlrev_b32 v{vT}, 4, v{vL}')
        k(f's_mul_i32 s{sT2}, s{sT0}, 1792')
        k(f'buffer_load_dwordx4 v[{TMP+20}:{TMP+23}], v{vT}, s[{sX}:{sX+3}], s{sT1} offen')
        k(f'buffer_load_dwordx4 v[{TMP+20}:{TMP+23}], v{vT}, s[{sW}:{sW+3}], s{sT2} offen')
        k('s_mov_b64 exec, 0xffff')
        k(f'buffer_load_dwordx4 v[{TMP+20}:{TMP+23}], v{vT}, s[{sX}:{sX+3}], s{sT1} offen offset:1024')
        k('s_mov_b32 exec_lo, -1')
        k('s_mov_b32 exec_hi, 0xffff')
        k(f'buffer_load_dwordx4 v[{TMP+20}:{TMP+23}], v{vT}, s[{sW}:{sW+3}], s{sT2} offen offset:1024')
        k('s_mov_b64 exec, -1')
    for r in range(64): k(f'v_mov_b32 v{ACC2+r}, 0')
    k('s_waitcnt lgkmcnt(0)')
    k(f's_mul_i32 s{sT0}, s{sRB}, {64*1536}')
    k(f's_lshl_b32 s{sT1}, s{sCB}, 8')
    k(f's_add_u32 s{sT0}, s{sT0}, s{sT1}')
    k(f's_add_u32 s{sT0}, s{sT0}, {WS_Z1}')
    k.srd(sZ1, sWSp, sWSp+1, 63*1536+256, f's{sT0}')
    k(f's_lshl_b32 s{sT0}, s{sCB}, 19')
    k(f's_lshl_b32 s{sT1}, s{sRB}, 7')
    k(f's_add_u32 s{sT0}, s{sT0}, s{sT1}')
    k(f's_add_u32 s{sT0}, s{sT0}, {WS_Z2T}')
    k.srd(sZ2, sWSp, sWSp+1, 127*4096+128, f's{sT0}')
    k(f's_lshl_b32 s{sT0}, s{sRB}, 13')
    k(f's_add_u32 s{sT0}, s{sT0}, {WS_ST}')
    k.srd(sST, sWSp, sWSp+1, 12*512, f's{sT0}')
    def reads(j):
        stage = j % NS; fs = j % 2
        sset = stage // 2; so = (stage % 2)*STG
        fb = FR + fs*24
        o = [f'ds_read_b128 v[{fb}:{fb+3}], v{vXA+sset} offset:{so}']
        for jj in range(4):
            for h in range(2):
                r = fb + 8 + 4*jj + 2*h
                o.append(f'ds_read_b64_tr_b16 v[{r}:{r+1}], v{vWA+4*sset+jj} offset:{so + h*1024}')
            if jj == 0: o.append(f'ds_read_b128 v[{fb+4}:{fb+7}], v{vXA+sset} offset:{so+2048}')
        return o
    def mf(j):
        fb = FR + (j % 2)*24
        o = []
        for jj in range(4):
            for i in range(2):
                x = fb + 4*i; w = fb + 8 + 4*jj
                if j < 10:
                    a = ACC2 + (i*4+jj)*4
                    o.append(f'v_mfma_f32_16x16x32_bf16 v[{a}:{a+3}], v[{x}:{x+3}], v[{w}:{w+3}], v[{a}:{a+3}]')
                else:
                    a = ACC1 + (i*4+jj)*4
                    o.append(f'v_mfma_f32_16x16x32_bf16 v[{a}:{a+3}], v[{w}:{w+3}], v[{x}:{x+3}], v[{a}:{a+3}]')
        return o
    side = []
    def step(j, pre=(), extra_wait='', nside=0):
        last = j == NKS - 1
        k(f's_waitcnt lgkmcnt(0){extra_wait}')
        rd = []
        if not last:
            k('s_barrier')
            rd = list(pre) + reads(j + 1)
        for _ in range(FRONT):
            if rd: k(rd.pop(0))
        for n, m in enumerate(mf(j)):
            k(m)
            for _ in range(RPM):
                if rd: k(rd.pop(0))
            c = 0
            while side and c < nside:
                g_ = side.pop(0)
                for x in g_: k(x)
                c += len(g_)
        assert not rd
    def exch_write(ACC):
        lab_hi = k.newlabel('xhi'); lab_j = k.newlabel('xj')
        k('s_nop 7')
        k(f's_cmp_lg_u32 s{sKGP}, 0')
        k(f's_cbranch_scc1 {lab_hi}')
        for j in range(4):
            k(f'ds_write_b128 v{vXW}, v[{ACC+16+4*j}:{ACC+19+4*j}] offset:{j*1024}')
        k(f's_branch {lab_j}')
        k.label(lab_hi)
        for j in range(4):
            k(f'ds_write_b128 v{vXW}, v[{ACC+4*j}:{ACC+3+4*j}] offset:{j*1024}')
        k('s_nop 1')
        for r in range(0, 16, 2):
            k(f'v_pk_add_f32 v[{ACC+r}:{ACC+r+1}], v[{ACC+16+r}:{ACC+17+r}], 0 op_sel_hi:[1,0]')
        k.label(lab_j)
    k('s_barrier')
    k.stamp(1)
    if LPF: PFD = True
    for r in reads(0): k(r)
    for j in range(10): step(j)
    k.stamp(2)
    exch_write(ACC2)
    Z = ACC2; E = ACC2 + 16
    step(10, pre=[f'ds_read_b128 v[{E+4*j}:{E+4*j+3}], v{vXR} offset:{j*1024}' for j in range(4)])
    kmain = k
    k = KB('side')
    for r in range(0, 16, 2):
        k(f'v_pk_add_f32 v[{Z+r}:{Z+r+1}], v[{Z+r}:{Z+r+1}], v[{E+r}:{E+r+1}]')
    for j in range(4): rnd_unpack(k, Z+4*j, E+2*j)
    gelu_pk(k, Z, 16, E, sC2, vC1)
    for j in range(4): rnd_unpack(k, Z+4*j, E+2*j)
    S = TMP; Q = TMP + 4; P = TMP + 8
    for r in (0, 2):
        k(f'v_pk_add_f32 v[{S+r}:{S+r+1}], v[{Z+r}:{Z+r+1}], v[{Z+4+r}:{Z+5+r}]')
        k(f'v_pk_add_f32 v[{Q+r}:{Q+r+1}], v[{Z+8+r}:{Z+9+r}], v[{Z+12+r}:{Z+13+r}]')
    for r in (0, 2):
        k(f'v_pk_add_f32 v[{S+r}:{S+r+1}], v[{S+r}:{S+r+1}], v[{Q+r}:{Q+r+1}]')
    k('s_nop 0')
    allreduce16(k, [S, S+1, S+2, S+3])
    for r in range(4):
        k(f'v_mul_f32 v{S+r}, 0x3c800000, v{S+r}')
    for j in range(4):
        for r in (0, 2):
            k(f'v_pk_add_f32 v[{E+4*j+r}:{E+4*j+r+1}], v[{Z+4*j+r}:{Z+4*j+r+1}], v[{S+r}:{S+r+1}] neg_lo:[0,1] neg_hi:[0,1]')
    for r in (0, 2):
        k(f'v_pk_mul_f32 v[{Q+r}:{Q+r+1}], v[{E+r}:{E+r+1}], v[{E+r}:{E+r+1}]')
    for j in (1, 2, 3):
        for r in (0, 2):
            k(f'v_pk_fma_f32 v[{Q+r}:{Q+r+1}], v[{E+4*j+r}:{E+4*j+r+1}], v[{E+4*j+r}:{E+4*j+r+1}], v[{Q+r}:{Q+r+1}]')
    k('s_nop 0')
    allreduce16(k, [Q, Q+1, Q+2, Q+3])
    k(f'v_cndmask_b32 v{P}, v{S}, v{S+1}, s[{sM1}:{sM1+1}]')
    k(f'v_cndmask_b32 v{P+1}, v{Q}, v{Q+1}, s[{sM1}:{sM1+1}]')
    k(f'v_cndmask_b32 v{P}, v{P}, v{S+2}, s[{sM2}:{sM2+1}]')
    k(f'v_cndmask_b32 v{P+1}, v{P+1}, v{Q+2}, s[{sM2}:{sM2+1}]')
    k(f'v_cndmask_b32 v{P}, v{P}, v{S+3}, s[{sM3}:{sM3+1}]')
    k(f'v_cndmask_b32 v{P+1}, v{P+1}, v{Q+3}, s[{sM3}:{sM3+1}]')
    k(f's_mov_b64 exec, s[{sEX}:{sEX+1}]')
    k(f'buffer_store_dwordx2 v[{P}:{P+1}], v{vSTW}, s[{sST}:{sST+3}], 0 offen sc1')
    k('s_mov_b64 exec, -1')
    lines = [l.strip() for l in k.L]
    k = kmain
    n_ = len(lines)
    side += [[l] for l in lines[:n_-3]] + [lines[n_-3:]]
    k.stamp(3)
    for j in range(11, NKS):
        step(j, extra_wait=' vmcnt(0)' if j == FLAGSTEP else '', nside=NSIDE)
        if j == FLAGSTEP - 1: assert not side, len(side)
    k.stamp(4)
    exch_write(ACC1)
    k('s_waitcnt lgkmcnt(0)')
    k('s_barrier')
    k.stamp(5)
    A = TMP + 8
    for r in range(8): k(f'v_mov_b32 v{A+r}, 0')
    Y = ACC1; E1 = ACC1 + 16
    for j in range(4):
        k(f'ds_read_b128 v[{E1+4*j}:{E1+4*j+3}], v{vXR} offset:{j*1024}')
    k(f's_mov_b64 exec, s[{sL12}:{sL12+1}]')
    k(f'buffer_load_dwordx4 v[{A}:{A+3}], v{vSTR}, s[{sST}:{sST+3}], 0 offen sc1')
    k(f'buffer_load_dwordx4 v[{A+4}:{A+7}], v{vSTR}, s[{sST}:{sST+3}], 0 offen offset:16 sc1')
    k('s_mov_b64 exec, -1')
    k('s_waitcnt lgkmcnt(0)')
    for r in range(0, 16, 2):
        k(f'v_pk_add_f32 v[{Y+r}:{Y+r+1}], v[{Y+r}:{Y+r+1}], v[{E1+r}:{E1+r+1}]')
    for j in range(4): rnd_unpack(k, Y+4*j, E1+2*j)
    gelu_pk(k, Y, 16, E1, sC2, vC1)
    for pp in range(2):
        res = E1 + 4*pp
        for i in range(2):
            y = Y + 8*pp + 4*i
            k(f'v_cvt_pk_bf16_f32 v{res+2*i}, v{y}, v{y+1}')
            k(f'v_cvt_pk_bf16_f32 v{res+2*i+1}, v{y+2}, v{y+3}')
        k('s_nop 1')
        k(f'v_permlane16_swap_b32 v{res}, v{res+2}')
        k(f'v_permlane16_swap_b32 v{res+1}, v{res+3}')
        k(f'buffer_store_dwordx4 v[{res}:{res+3}], v{vZ1O}, s[{sZ1}:{sZ1+3}], 0 offen offset:{64*pp}')
    k.stamp(6)
    k('s_waitcnt vmcnt(2)')
    Mn = TMP; Vr = TMP + 4; T2 = TMP + 16
    for r in range(4): k(f'v_mov_b32 v{Mn+r}, v{A+2*r}')
    k('s_nop 0')
    allreduce16(k, [Mn, Mn+1, Mn+2, Mn+3])
    k(f's_mov_b32 s{sT0}, {hex(f2u(1.0/12))}')
    for r in range(4): k(f'v_mul_f32 v{Mn+r}, s{sT0}, v{Mn+r}')
    for r in range(4): k(f'v_sub_f32 v{A+2*r}, v{A+2*r}, v{Mn+r}')
    for r in range(4): k(f'v_mul_f32 v{A+2*r}, v{A+2*r}, v{A+2*r}')
    for r in range(4): k(f'v_fma_f32 v{Vr+r}, v{A+2*r}, v{vW64}, v{A+2*r+1}')
    k('s_nop 0')
    allreduce16(k, [Vr, Vr+1, Vr+2, Vr+3])
    k(f's_mov_b32 s{sT0}, {hex(f2u(1.0/768))}')
    for r in range(4): k(f'v_mul_f32 v{Vr+r}, s{sT0}, v{Vr+r}')
    rnd_unpack(k, Mn, T2)
    rnd_unpack(k, Vr, T2+2)
    for r in range(4): k(f'v_add_f32 v{Vr+r}, {hex(f2u(1e-5))}, v{Vr+r}')
    rnd_unpack(k, Vr, T2)
    for r in range(4): k(f'v_sqrt_f32 v{Vr+r}, v{Vr+r}')
    k('s_nop 0')
    rnd_unpack(k, Vr, T2)
    for r in range(4): k(f'v_rcp_f32 v{Vr+r}, v{Vr+r}')
    for j in range(4):
        for r in (0, 2):
            k(f'v_pk_add_f32 v[{Z+4*j+r}:{Z+4*j+r+1}], v[{Z+4*j+r}:{Z+4*j+r+1}], v[{Mn+r}:{Mn+r+1}] neg_lo:[0,1] neg_hi:[0,1]')
    for j in range(4): rnd_unpack(k, Z+4*j, E+2*j)
    for j in range(4):
        for r in (0, 2):
            k(f'v_pk_mul_f32 v[{Z+4*j+r}:{Z+4*j+r+1}], v[{Z+4*j+r}:{Z+4*j+r+1}], v[{Vr+r}:{Vr+r+1}]')
    for j in range(4):
        k(f'v_cvt_pk_bf16_f32 v{E+8+2*j}, v{Z+4*j}, v{Z+4*j+1}')
        k(f'v_cvt_pk_bf16_f32 v{E+9+2*j}, v{Z+4*j+2}, v{Z+4*j+3}')
        k(f's_mov_b32 s{sT0}, {j*16*4096}')
        k(f'buffer_store_dwordx2 v[{E+8+2*j}:{E+9+2*j}], v{vZ2O}, s[{sZ2}:{sZ2+3}], s{sT0} offen')
    k.stamp(7)
    k.stamp_flush(8, sWSp)
    return XCH + 32768, 168

if __name__ == '__main__':
    import sys
    k = KB('k1')
    k.stamps = len(sys.argv) > 1
    if len(sys.argv) > 3: FRONT = int(sys.argv[2]); RPM = int(sys.argv[3])
    k('s_cmp_ge_u32 s2, 192')
    k('s_cbranch_scc1 k1_end')
    lds, nv = gemm1b_role(k)
    k.label('k1_end')
    k('s_endpgm')
    print(lds, nv)
    open('g1b.s', 'w').write(wrap('gemm1 test', [('k1_kernel', 192, 768, lds)], [('k1_kernel', k.text(), nv, 100)]))
```

```python
from asmlib import *
from layout import *
from gemm3 import rnd_unpack, unpack4
from gemm1 import f2u, LOG2E
from ssm import cmul, stream, XROWS
import math, struct

R0, R1O, R1E, R2O, R2E, R3O, R3E = [2*x for x in (0, 304, 496, 688, 816, 944, 1024)]
R0P, R3P = 2208, 2816
KLP = 3136
def setexec(k, nl):
    m = (1 << nl) - 1
    if nl <= 32 and False: pass
    k(f's_mov_b32 exec_lo, {hex(m & 0xffffffff)}'); k(f's_mov_b32 exec_hi, {hex(m >> 32)}')

PF0 = 2
KW = 14464
def kgen_role(k, sID, prefetch=True):
    XY = 0; XYP = 272
    k.stamp(0)
    k(f's_load_dwordx8 s[4:11], s[0:1], {KA["A_re"]}')
    k(f's_load_dwordx4 s[12:15], s[0:1], {KA["C_re"]}')
    k(f's_load_dwordx2 s[16:17], s[0:1], {KA["log_dt"]}')
    k(f's_load_dwordx2 s[20:21], s[0:1], {KA["ws"]}')
    k(f's_load_dwordx2 s[18:19], s[0:1], {KA["w_sp"]}')
    k(f's_load_dwordx2 s[60:61], s[0:1], {KA["w_out"]}')
    sWV, sD, sT0, sT1, sLB, sCNT, sLD = 22, 23, 24, 25, 26, 27, 28
    SR = 32; sKL = 56; sPF = 64; sPF2 = 68
    vL, vT, vT2, vT3, vPO, vXW, vXR, vDT = 1, 2, 3, 4, 5, 6, 7, 8
    PS = 10; PA = 16; DK = 36; W0 = 52
    k(f'v_lshrrev_b32 v{vT}, 6, v0')
    k(f'v_and_b32 v{vL}, 63, v0')
    k(f'v_readfirstlane_b32 s{sWV}, v{vT}')
    k(f'v_lshlrev_b32 v{vPO}, 1, v{vL}')
    k(f's_mul_i32 s{sD}, s{sID}, 10')
    k(f's_add_u32 s{sD}, s{sD}, s{sWV}')
    k(f's_mul_i32 s{sLB}, s{sWV}, {KW}')
    k(f's_mul_i32 s{sT0}, s{sD}, 384')
    for r in range(18): k(f'v_mov_b32 v{PA+r}, 0')
    k(f's_lshr_b32 s{sT1}, s{sD}, 1')
    k(f's_lshl_b32 s{sT1}, s{sT1}, 2')
    k('s_waitcnt lgkmcnt(0)')
    k(f's_load_dword s{sLD}, s[16:17], s{sT1}')
    for a in range(6):
        k.srd(SR+4*a, 4+2*a, 5+2*a, 384, f's{sT0}')
    for p_ in range(3):
        for a in range(6):
            k(f'buffer_load_short_d16_hi v{PA+6*p_+a}, v{vPO}, s[{SR+4*a}:{SR+4*a+3}], 0 offen offset:{128*p_}')
    k(f's_mul_i32 s{sT0}, s{sD}, {KLP}')
    k(f's_add_u32 s{sT0}, s{sT0}, {WS_KL}')
    k.srd(sKL, 20, 21, KLP, f's{sT0}')
    k(f's_mul_i32 s{sT0}, s{sD}, 13312')
    k.srd(sPF, 18, 19, 0, f's{sT0}')
    k(f's_sub_u32 s{sT1}, {2048*4096}, s{sT0}')
    k(f's_max_i32 s{sT1}, s{sT1}, 0')
    k(f's_min_u32 s{sPF+2}, s{sT1}, 13312')
    k(f's_mul_i32 s{sT0}, s{sD}, 1536')
    k.srd(sPF2, 60, 61, 1536, f's{sT0}')
    k(f'v_lshlrev_b32 v{vXW}, 2, v{vL}')
    k(f'v_add_u32 v{vXW}, s{sLB}, v{vXW}')
    k(f'v_and_b32 v{vT}, 31, v{vL}')
    k(f'v_mul_u32_u24 v{vT}, {XYP}, v{vT}')
    k(f'v_lshrrev_b32 v{vT2}, 5, v{vL}')
    k(f'v_lshl_add_u32 v{vT}, v{vT2}, 4, v{vT}')
    k(f'v_add_u32 v{vXR}, s{sLB}, v{vT}')
    for r in range(16): k(f'v_mov_b32 v{DK+r}, 0')
    k('s_waitcnt lgkmcnt(0)')
    k(f's_lshl_b32 s{sT1}, s{sLD}, 16')
    k(f's_and_b32 s{sLD}, s{sLD}, 0xffff0000')
    k(f's_bitcmp1_b32 s{sD}, 0')
    k(f's_cselect_b32 s{sT1}, s{sLD}, s{sT1}')
    Lhi = f2u(LOG2E); Lhi_f = struct.unpack('<f', struct.pack('<I', Lhi))[0]; Llo = LOG2E - Lhi_f
    k(f'v_mov_b32 v{vT}, s{sT1}')
    k(f's_mov_b32 s{sT0}, {hex(Lhi)}')
    k(f'v_mul_f32 v{vT2}, s{sT0}, v{vT}')
    k(f'v_fma_f32 v{vT3}, v{vT}, s{sT0}, -v{vT2}')
    k(f'v_fmac_f32 v{vT3}, {hex(f2u(Llo))}, v{vT}')
    k(f'v_exp_f32 v{vT2}, v{vT2}')
    k(f'v_mul_f32 v{vT3}, {hex(f2u(math.log(2.0)))}, v{vT3}')
    k(f'v_fma_f32 v{vDT}, v{vT2}, v{vT3}, v{vT2}')
    k(f'v_cvt_pk_bf16_f32 v{vDT}, v{vDT}, v{vDT}')
    k(f'v_lshlrev_b32 v{vDT}, 16, v{vDT}')
    A2, B2 = W0, W0+1
    E1, E8, E16, E256, E512 = W0+2, W0+4, W0+6, W0+8, W0+10
    TT, T2 = W0+12, W0+14
    xreg = {}; nxt = W0+16
    for l in list(range(9)) + [516, 520, 1032, 1544]:
        xreg[l] = nxt; nxt += 2
    TX = nxt; nxt += 2
    YA, YB = nxt, nxt+2; nxt += 4
    PK = nxt; nxt += 4
    FA = nxt; nxt += 32
    PFR = nxt; nxt += 4
    k(f'v_lshlrev_b32 v{vPO}, 4, v{vL}')
    k(f's_mov_b32 s{sCNT}, 0')
    k('s_waitcnt vmcnt(0)')
    k.stamp(1)
    lp = k.newlabel('kg')
    k.label(lp)
    X0 = xreg[0]
    k(f'v_mul_f32 v{A2}, v{vDT}, v{PA}')
    k(f'v_mul_f32 v{B2}, v{vDT}, v{PA+1}')
    k(f'v_pk_mul_f32 v[{TT}:{TT+1}], v[{PA+2}:{PA+3}], v[{vDT}:{vDT+1}] op_sel_hi:[1,0]')
    k(f'v_mul_f32 v{A2}, {hex(f2u(LOG2E))}, v{A2}')
    k(f'v_mul_f32 v{B2}, {hex(f2u(1/(2*math.pi)))}, v{B2}')
    cmul(k, X0, PA+4, TT, T2)
    for r in range(0, 12, 2):
        k(f'v_pk_add_f32 v[{PA+r}:{PA+r+1}], v[{PA+6+r}:{PA+7+r}], 0 op_sel_hi:[1,0]')
    if prefetch:
        lpf = k.newlabel('nopf')
        k(f's_cmp_lt_u32 s{sCNT}, {PF0}')
        k(f's_cbranch_scc1 {lpf}')
        PFN = -(-13 // (3 - PF0))
        k(f's_sub_u32 s{sT1}, s{sCNT}, {PF0}')
        k(f's_mul_i32 s{sT0}, s{sT1}, {PFN*1024}')
        for q in range(PFN):
            if q and q % 4 == 0: k(f's_add_u32 s{sT0}, s{sT0}, 4096')
            k(f'buffer_load_dwordx4 v[{PFR}:{PFR+3}], v{vPO}, s[{sPF}:{sPF+3}], s{sT0} offen offset:{1024*(q % 4)}')
        k(f's_lshl_b32 s{sT0}, s{sT1}, 11')
        k(f'buffer_load_dwordx4 v[{PFR}:{PFR+3}], v{vPO}, s[{sPF2}:{sPF2+3}], s{sT0} offen')
        k(f'buffer_load_dwordx4 v[{PFR}:{PFR+3}], v{vPO}, s[{sPF2}:{sPF2+3}], s{sT0} offen offset:1024')
        k.label(lpf)
    def anchor(E, l, t):
        if l == 1:
            k(f'v_exp_f32 v{t}, v{A2}')
            k(f'v_fract_f32 v{t+1}, v{B2}')
        else:
            k(f'v_mul_f32 v{t}, {hex(f2u(float(l)))}, v{A2}')
            k(f'v_mul_f32 v{t+1}, {hex(f2u(float(l)))}, v{B2}')
            k(f'v_exp_f32 v{t}, v{t}')
            k(f'v_fract_f32 v{t+1}, v{t+1}')
        k(f'v_cos_f32 v{E}, v{t+1}')
        k(f'v_sin_f32 v{E+1}, v{t+1}')
        k('s_nop 0')
        k(f'v_pk_mul_f32 v[{E}:{E+1}], v[{E}:{E+1}], v[{t}:{t+1}] op_sel_hi:[1,0]')
    anchor(E1, 1, TT); anchor(E8, 8, T2); anchor(E16, 16, TT); anchor(E256, 256, T2); anchor(E512, 512, TT)
    pk = [0]
    def putX(l, reg):
        row = XROWS.index(l); p = PK + (pk[0] % 4); pk[0] += 1
        k(f'v_cvt_pk_bf16_f32 v{p}, v{reg}, -v{reg+1}')
        k(f'ds_write_b32 v{vXW}, v{p} offset:{XY + row*XYP}')
    def putY(j, reg):
        p = PK + (pk[0] % 4); pk[0] += 1
        k(f'v_cvt_pk_bf16_f32 v{p}, v{reg}, v{reg+1}')
        k(f'ds_write_b32 v{vXW}, v{p} offset:{XY + (21+j)*XYP}')
    putX(0, X0)
    k(f'v_mov_b32 v{PK+3}, 0x3f80')
    k(f'ds_write_b32 v{vXW}, v{PK+3} offset:{XY + 21*XYP}')
    putY(1, E8); putY(2, E16)
    xs = [(h, xreg[h], xreg[h-1], E1) for h in range(1, 9)]
    xs += [(258, TX, xreg[2], E256), (260, TX, xreg[4], E256), (262, TX, xreg[6], E256), (264, TX, xreg[8], E256),
           (516, xreg[516], xreg[4], E512), (520, xreg[520], xreg[8], E512), (772, TX, xreg[516], E256), (776, TX, xreg[520], E256),
           (1032, xreg[1032], xreg[520], E512), (1288, TX, xreg[1032], E256), (1544, xreg[1544], xreg[1032], E512), (1800, TX, xreg[1544], E256)]
    ya_src, yb_src = E8, E16
    for j in range(3, 32):
        if j % 2 == 1:
            cmul(k, YA, ya_src, E16, TT); ya_src = YA; putY(j, YA)
        else:
            cmul(k, YB, yb_src, E16, T2); yb_src = YB; putY(j, YB)
        if xs:
            l, dst, a, b = xs.pop(0)
            cmul(k, dst, a, b, FA); putX(l, dst)
    k('s_waitcnt lgkmcnt(0)')
    items = []
    for ks in range(8):
        def rd(b, ks=ks):
            return [f'ds_read_b128 v[{b}:{b+3}], v{vXR} offset:{XY + ks*32}',
                    f'ds_read_b128 v[{b+16}:{b+19}], v{vXR} offset:{XY + 21*XYP + ks*32}']
        def mm(b):
            return [f'v_mfma_f32_32x32x16_bf16 v[{DK}:{DK+15}], v[{b}:{b+3}], v[{b+16}:{b+19}], v[{DK}:{DK+15}]']
        items.append((rd, mm))
    stream(k, items, FA, 4, 3)
    k(f's_add_u32 s{sCNT}, s{sCNT}, 1')
    k(f's_cmp_lt_u32 s{sCNT}, 3')
    k(f's_cbranch_scc1 {lp}')
    k.stamp(2)
    V = W0
    for r in range(4): k(f'v_mov_b32 v{V+r}, 0')
    vLB16 = vXR
    k(f'v_add_u32 v{vLB16}, s{sLB}, v{vPO}')
    for q in range(3):
        k(f'ds_write_b128 v{vLB16}, v[{V}:{V+3}] offset:{1024*q}')
    vJ, vH = vT, vT2
    k(f'v_and_b32 v{vJ}, 31, v{vL}')
    k(f'v_lshrrev_b32 v{vH}, 5, v{vL}')
    a0, a1, a2, a3 = V+4, V+5, V+6, V+7
    p = V + 8
    k(f'v_lshlrev_b32 v{a0}, 4, v{vJ}')
    k(f'v_lshl_add_u32 v{a0}, v{vH}, 3, v{a0}')
    k(f'v_sub_u32 v{a0}, s{sLB}, v{a0}')
    k(f'v_add_u32 v{a0}, {R0 + 568}, v{a0}')
    k(f'v_lshlrev_b32 v{a1}, 2, v{vJ}')
    k(f'v_sub_u32 v{a1}, s{sLB}, v{a1}')
    k(f'v_add_u32 v{a1}, 252, v{a1}')
    k(f'v_lshlrev_b32 v{a2}, 1, v{vJ}')
    k(f'v_sub_u32 v{a2}, s{sLB}, v{a2}')
    k(f'v_add_u32 v{a2}, {2*63}, v{a2}')
    k(f'v_lshrrev_b32 v{a3}, 1, v{vJ}')
    k(f'v_lshlrev_b32 v{a3}, 1, v{a3}')
    k(f'v_sub_u32 v{a3}, s{sLB}, v{a3}')
    k(f'v_and_b32 v{vH}, 1, v{vJ}')
    k(f'v_mul_u32_u24 v{vH}, {R3E - R3O}, v{vH}')
    k(f'v_add3_u32 v{a3}, v{a3}, v{vH}, {2*(63-48)}')
    k(f'v_cvt_pk_bf16_f32 v{p}, v{DK+3}, v{DK+2}')
    k(f'v_cvt_pk_bf16_f32 v{p+1}, v{DK+1}, v{DK}')
    k(f'ds_write_b64 v{a0}, v[{p}:{p+1}]')
    k(f'v_cvt_pk_bf16_f32 v{p+2}, v{DK+5}, v{DK+4}')
    k(f'v_cvt_pk_bf16_f32 v{p+3}, v{DK+7}, v{DK+6}')
    k(f'v_cvt_pk_bf16_f32 v{p+4}, v{DK+8}, v{DK+9}')
    k(f'v_cvt_pk_bf16_f32 v{p+5}, v{DK+10}, v{DK+11}')
    k(f'v_cvt_pk_bf16_f32 v{p+6}, v{DK+8}, v{DK+8}')
    k('s_mov_b32 exec_hi, 0')
    k(f'ds_write_b32 v{a1}, v{p+2} offset:{R1O}')
    k(f'ds_write_b32 v{a1}, v{p+3} offset:{R1E}')
    k(f'ds_write_b16 v{a3}, v{p+4} offset:{R3O + 96}')
    k(f'ds_write_b16_d16_hi v{a3}, v{p+4} offset:{R3O + 64}')
    k(f'ds_write_b16 v{a3}, v{p+5} offset:{R3O + 32}')
    k(f'ds_write_b16_d16_hi v{a3}, v{p+5} offset:{R3O}')
    k('s_mov_b32 exec_lo, 0x80000000')
    k(f'ds_write_b16 v{a1}, v{p+3} offset:{R1O - 2}')
    k('s_mov_b32 exec_lo, 0')
    k('s_mov_b32 exec_hi, -1')
    k(f'ds_write_b16_d16_hi v{a2}, v{p+2} offset:{R2O + 64}')
    k(f'ds_write_b16 v{a2}, v{p+2} offset:{R2E + 64}')
    k(f'ds_write_b16_d16_hi v{a2}, v{p+3} offset:{R2O}')
    k(f'ds_write_b16 v{a2}, v{p+3} offset:{R2E}')
    k('s_mov_b32 exec_hi, 0x80000000')
    k(f'v_mov_b32 v{a0}, s{sLB}')
    k(f'ds_write_b32 v{a0}, v{p+6} offset:{R0 + 60}')
    k('s_mov_b64 exec, -1')
    k(f'v_add_u32 v{a1}, {R3O}, v{vXW}')
    rounds = [(vXW, 0, R0P), (vXW, 64, R0P + 256), (vXW, 128, R0P + 512), (a1, 0, R3P - R3O), (a1, 64, R3P - R3O + 256)]
    for n_, (ad, o, dst) in enumerate(rounds):
        k(f'ds_read2_b32 v[{p+2*n_}:{p+2*n_+1}], v{ad} offset0:{o} offset1:{o+1}')
    for n_, (ad, o, dst) in enumerate(rounds):
        k('s_waitcnt lgkmcnt(4)')
        k(f'v_alignbit_b32 v{p+2*n_}, v{p+2*n_+1}, v{p+2*n_}, 16')
        k(f'ds_write_b32 v{ad}, v{p+2*n_} offset:{dst}')
    O = p + 12
    for q in range(4):
        k(f'ds_read_b128 v[{O+4*q}:{O+4*q+3}], v{vLB16} offset:{1024*q}')
    for q in range(4):
        k(f's_waitcnt lgkmcnt({3-q})')
        k(f'buffer_store_dwordx4 v[{O+4*q}:{O+4*q+3}], v{vPO}, s[{sKL}:{sKL+3}], 0 offen offset:{1024*q}')
    k.stamp_flush(3, 20)
    return 10*KW, nxt

CW = 14928
UB = 0; U0 = 16
WR = 4112
C7B, C9B, F2B = WR, WR + 2080, WR + 4160
C3B, C5B = WR, WR + 3616
U2B = WR + 6720
def conv_role(k, sID):
    k.stamp(0)
    k(f's_load_dwordx2 s[4:5], s[0:1], {KA["Dskip"]}')
    k(f's_load_dwordx2 s[20:21], s[0:1], {KA["ws"]}')
    sWV, sD, sT0, sT1, sLB, sDS = 22, 23, 24, 25, 26, 28
    sUT, sAT, sKL = 32, 36, 40
    vL, vX, vKG, vT, vT2, vT3, vUO = 1, 2, 3, 4, 5, 6, 7
    vK0, vK1, vK2, vK3, vU, vD1, vD2, vD3, vDF, vR4, vC4, vEU, vEO, vLW = range(8, 22)
    FX = 22
    UL01, UL23 = 26, 42
    V = 58
    SV = 128
    KX = 144
    k32 = [UL01 + 4*i for i in range(4)] + [KX + 4*i for i in range(6)]
    k(f'v_lshrrev_b32 v{vT}, 6, v0')
    k(f'v_and_b32 v{vL}, 63, v0')
    k(f'v_readfirstlane_b32 s{sWV}, v{vT}')
    k(f'v_lshlrev_b32 v{vUO}, 4, v{vL}')
    k(f's_mul_i32 s{sD}, s{sID}, 10')
    k(f's_add_u32 s{sD}, s{sD}, s{sWV}')
    k(f's_mul_i32 s{sLB}, s{sWV}, {CW}')
    k(f's_mul_i32 s{sT0}, s{sD}, {UT_PITCH*2}')
    k(f's_add_u32 s{sT0}, s{sT0}, {WS_UT}')
    k(f's_lshr_b32 s{sT1}, s{sD}, 1')
    k(f's_lshl_b32 s{sT1}, s{sT1}, 2')
    k('s_waitcnt lgkmcnt(0)')
    k(f's_load_dword s{sDS+1}, s[4:5], s{sT1}')
    k.srd(sUT, 20, 21, UT_PITCH*2, f's{sT0}')
    for q in range(4):
        for h in range(2):
            r = (UL01 if q < 2 else UL23) + 8*(q % 2) + 4*h
            k(f'buffer_load_dwordx4 v[{r}:{r+3}], v{vUO}, s[{sUT}:{sUT+3}], 0 offen offset:{(UT_PAD - 12 + 512*q + 8*h)*2}')
    k(f's_add_u32 m0, s{sLB}, {U0 - UT_PAD*2 + 65536}' if False else f's_add_u32 s{sT1}, s{sLB}, {U0 + 1024}')
    k(f's_mov_b32 s{sT0}, {UT_PAD*2}')
    k(f's_add_u32 m0, s{sLB}, {U0}')
    k('s_nop 0')
    for q in range(4):
        k(f'buffer_load_dwordx4 v{vUO}, s[{sUT}:{sUT+3}], s{sT0} offen offset:{1024*q} lds')
    k(f's_mov_b32 s{sT0}, {(UT_PAD-14)*2}')
    k(f's_add_u32 m0, s{sLB}, {U2B}')
    k('s_nop 0')
    for q in range(4):
        k(f'buffer_load_dwordx4 v{vUO}, s[{sUT}:{sUT+3}], s{sT0} offen offset:{1024*q} lds')
    k(f's_mul_i32 s{sT0}, s{sD}, {KLP}')
    k(f's_add_u32 s{sT0}, s{sT0}, {WS_KL}')
    k.srd(sKL, 20, 21, KLP, f's{sT0}')
    k(f's_lshl_b32 s{sT0}, s{sD}, 12')
    k(f's_add_u32 s{sT0}, s{sT0}, {WS_AT}')
    k.srd(sAT, 20, 21, 4096, f's{sT0}')
    k(f'v_and_b32 v{vX}, 15, v{vL}')
    k(f'v_lshrrev_b32 v{vKG}, 4, v{vL}')
    k(f'v_add_u32 v{vLW}, s{sLB}, v{vUO}')
    k(f'v_lshlrev_b32 v{vT}, 4, v{vKG}')
    k(f'v_lshl_add_u32 v{vT2}, v{vX}, 1, v{vT}')
    k(f'v_and_b32 v{vEU}, 1, v{vX}')
    k(f'v_mul_u32_u24 v{vEO}, {R0P - 2 - R0}, v{vEU}')
    k(f'v_add_u32 v{vT2}, v{vT2}, v{vEO}')
    k(f'v_sub_u32 v{vK0}, {R0P - 2 + 2*(295-256)}, v{vT2}')
    k(f'v_lshlrev_b32 v{vT2}, 3, v{vX}')
    k(f'v_sub_u32 v{vK1}, v{vT}, v{vT2}')
    k(f'v_add_u32 v{vK1}, {120 + R1O}, v{vK1}')
    k(f'v_lshlrev_b32 v{vT2}, 2, v{vX}')
    k(f'v_sub_u32 v{vK2}, v{vT}, v{vT2}')
    k(f'v_add_u32 v{vK2}, {60 + R2O}, v{vK2}')
    k(f'v_and_b32 v{vT2}, 1, v{vKG}')
    k(f'v_lshrrev_b32 v{vT3}, 1, v{vKG}')
    k(f'v_mul_u32_u24 v{vK3}, {R3E - R3O}, v{vT3}')
    k(f'v_lshl_add_u32 v{vK3}, v{vT2}, 4, v{vK3}')
    k(f'v_lshlrev_b32 v{vR4}, 1, v{vX}')
    k(f'v_sub_u32 v{vK3}, v{vK3}, v{vR4}')
    k(f'v_add_u32 v{vK3}, {R3P - 2 + 30}, v{vK3}')
    k(f'v_mul_u32_u24 v{vEO}, {R3P - 2 - R3O}, v{vEU}')
    k(f'v_sub_u32 v{vK3}, v{vK3}, v{vEO}')
    k(f'v_lshlrev_b32 v{vU}, 5, v{vX}')
    k(f'v_sub_u32 v{vU}, v{vU}, v{vT}')
    k(f'v_add_u32 v{vU}, s{sLB}, v{vU}')
    k(f'v_lshrrev_b32 v{vR4}, 2, v{vX}')
    k(f'v_and_b32 v{vC4}, 3, v{vX}')
    k(f'v_lshlrev_b32 v{vC4}, 3, v{vC4}')
    k(f'v_add_u32 v{vC4}, s{sLB}, v{vC4}')
    k(f'v_lshl_add_u32 v{vD1}, v{vKG}, 3, v{vR4}')
    k(f'v_lshl_add_u32 v{vD2}, v{vD1}, 4, v{vC4}')
    k(f'v_lshl_add_u32 v{vD1}, v{vD1}, 3, v{vC4}')
    k(f'v_lshl_add_u32 v{vD3}, v{vT2}, 3, v{vR4}')
    k(f'v_lshl_add_u32 v{vD3}, v{vD3}, 5, v{vC4}')
    k(f'v_mul_u32_u24 v{vT3}, {(C9B + 32 - 32) - (C7B + 32 - 16)}, v{vT3}')
    k(f'v_add_u32 v{vD3}, v{vT3}, v{vD3}')
    k(f'v_lshl_add_u32 v{vDF}, v{vKG}, 2, v{vR4}')
    k(f'v_lshl_add_u32 v{vDF}, v{vDF}, 5, v{vC4}')
    k(f'v_lshlrev_b32 v{vEO}, 5, v{vX}')
    k(f'v_lshl_add_u32 v{vEO}, v{vKG}, 3, v{vEO}')
    k(f'v_add_u32 v{vEU}, s{sLB}, v{vEO}')
    Z = V
    for r in range(4): k(f'v_mov_b32 v{Z+r}, 0')
    k(f'v_mul_u32_u24 v{vT}, 2080, v{vL}')
    k(f'v_add_u32 v{vT}, {WR - 2080}, v{vT}')
    k(f'v_cmp_eq_u32 vcc, 0, v{vL}')
    k(f'v_mov_b32 v{vT3}, s{sLB}')
    k(f'v_add_u32 v{vT}, s{sLB}, v{vT}')
    k(f'v_cndmask_b32 v{vT}, v{vT}, v{vT3}, vcc')
    k('s_mov_b64 exec, 0xf')
    k(f'ds_write_b128 v{vT}, v[{Z}:{Z+3}]')
    k('s_mov_b64 exec, -1')
    k('s_waitcnt lgkmcnt(0)')
    k(f's_lshl_b32 s{sDS}, s{sDS+1}, 16')
    k(f's_and_b32 s{sDS+1}, s{sDS+1}, 0xffff0000')
    k(f's_bitcmp1_b32 s{sD}, 0')
    k(f's_cselect_b32 s{sDS}, s{sDS+1}, s{sDS}')
    k(f's_mov_b32 s{sDS+1}, s{sDS}')
    Ue = V; Pe = V + 32; PKR = V + 62
    ue = lambda i, c=0: Ue + 2*(i+4) + c
    pe = lambda i, c=0: Pe + 2*(i+4) + c
    ce = lambda i, c=0: ue(i+1, c)
    def add(d, a, b): k(f'v_pk_add_f32 v[{d}:{d+1}], v[{a}:{a+1}], v[{b}:{b+1}]')
    def pack(fn, c, pr):
        for e in range(4):
            k(f'v_cvt_pk_bf16_f32 v{pr+e}, v{fn(2*e, c)}, v{fn(2*e+1, c)}')
    def wr(pr, base, q, nl=64):
        if nl < 64: setexec(k, nl)
        k(f'ds_write_b128 v{vLW}, v[{pr}:{pr+3}] offset:{base + 16 + 1024*q}')
        if nl < 64: k('s_mov_b64 exec, -1')
    def unpack(src, lo, hi):
        for c in range(2):
            for i in range(lo, hi+1):
                d = src + 8*c + (i+4)//2
                if (i+4) % 2 == 0: k(f'v_lshlrev_b32 v{ue(i,c)}, 16, v{d}')
                else: k(f'v_and_b32 v{ue(i,c)}, 0xffff0000, v{d}')
    k('s_waitcnt vmcnt(12)')
    k.stamp(1)
    unpack(UL01, -4, 11)
    def kload(r, addr, off): k(f'buffer_load_dwordx4 v[{r}:{r+3}], v{addr}, s[{sKL}:{sKL+3}], 0 offen offset:{off}')
    k(f'v_mov_b32 v{vT}, {R2E + 64}')
    k(f'buffer_load_ushort v{FX+2}, v{vT}, s[{sKL}:{sKL+3}], 0 offen')
    for c in range(4): kload(k32[c], vK3, 32*c)
    for li in range(2):
        for c in range(3): kload(k32[4 + 3*li + c], vK2, (R2E - R2O)*li + 64*c)
    for i in range(-4, 11): add(pe(i), ue(i), ue(i+1))
    for c in range(2):
        pack(pe, c, PKR + 4*c); wr(PKR + 4*c, F2B, c)
    for i in range(-3, 8): add(ce(i), pe(i-1), ue(i+1))
    for c in range(2): pack(ce, c, SV + 4*c)
    for i in range(7, -3, -1): add(ce(i), ce(i-1), pe(i+1))
    for c in range(2): pack(ce, c, SV + 8 + 4*c)
    for i in range(7, -2, -1): add(ce(i), ce(i-1), pe(i+2))
    for c in range(2):
        pack(ce, c, PKR + 4*c); wr(PKR + 4*c, C7B, c)
    for i in range(7, -1, -1): add(ce(i), ce(i-1), pe(i+3))
    for c in range(2):
        pack(ce, c, PKR + 4*c); wr(PKR + 4*c, C9B, c)
    k('s_waitcnt vmcnt(19)')
    unpack(UL23, -2, 9)
    for i in range(-2, 9): add(pe(i), ue(i), ue(i+1))
    pack(pe, 0, PKR); wr(PKR, F2B, 2, 1)
    for i in range(-1, 8): add(ce(i), pe(i-1), ue(i+1))
    S2 = UL23
    for c in range(2): pack(ce, c, S2 + 4*c)
    for i in range(7, -1, -1): add(ce(i), ce(i-1), pe(i+1))
    pack(ce, 0, S2 + 8)
    k.stamp(2)
    ACC = V; RG = V + 32
    for r in range(32): k(f'v_mov_b32 v{ACC+r}, 0')
    k(f'v_lshlrev_b32 v{vT2}, 2, v{vKG}')
    k(f'v_sub_u32 v{vT2}, v{vX}, v{vT2}')
    k('s_waitcnt vmcnt(0)')
    k(f'v_lshlrev_b32 v{FX+3}, 16, v{FX+2}')
    for half in range(2):
        k(f'v_cmp_eq_u32 vcc, {2*half}, v{vT2}')
        k(f'v_mov_b32 v{FX+half}, 0')
        k(f'v_cmp_eq_u32 s[{sT0}:{sT0+1}], {2*half+1}, v{vT2}')
        k(f'v_cndmask_b32 v{FX+half}, v{FX+half}, v{FX+2}, vcc')
        k('s_nop 0')
        k(f'v_cndmask_b32 v{FX+half}, v{FX+half}, v{FX+3}, s[{sT0}:{sT0+1}]')
    acc = lambda T: f'v[{ACC+4*T}:{ACC+4*T+3}]'
    def M(T, a, b): return f'v_mfma_f32_16x16x32_bf16 {acc(T)}, v[{a}:{a+3}], v[{b}:{b+3}], {acc(T)}'
    def trp(addr, off, hstep):
        return lambda b: [f'ds_read_b64_tr_b16 v[{b}:{b+1}], v{addr} offset:{off}',
                          f'ds_read_b64_tr_b16 v[{b+2}:{b+3}], v{addr} offset:{off + hstep}']
    items = []
    for cp in range(4):
        items.append((trp(vD3, C7B + 32 - 16 + 512*cp, 128),
                      lambda b, cp=cp: [M(4 + cp + n, b, k32[3 - n]) for n in range(4 - cp)]))
    for T in range(4, 8):
        items.append((lambda b, T=T: [f'ds_read_b64_tr_b16 v[{b}:{b+1}], v{vDF} offset:{F2B + 32 - 8 + 512*(T-4)}'],
                      lambda b, T=T: [f'v_mfma_f32_16x16x16_bf16 {acc(T)}, v[{b}:{b+1}], v[{FX}:{FX+1}], {acc(T)}']))
    k('s_waitcnt lgkmcnt(0)')
    for i, it in enumerate(items):
        for x in it[0](RG + 4*i): k(x)
    k(f'v_mov_b32 v{vT}, s{sLB}')
    for r in range(4): k(f'v_mov_b32 v{PKR+r}, 0')
    k(f'ds_write_b128 v{vT}, v[{PKR}:{PKR+3}] offset:{C3B}')
    k(f'ds_write_b128 v{vT}, v[{PKR}:{PKR+3}] offset:{C5B}')
    wr(SV, C3B, 0); wr(SV+4, C3B, 1); wr(S2, C3B, 2); wr(S2+4, C3B, 3, 33)
    wr(SV+8, C5B, 0); wr(SV+12, C5B, 1); wr(S2+8, C5B, 2)
    k('s_waitcnt lgkmcnt(9)')
    for i, it in enumerate(items):
        for x in it[1](RG + 4*i): k(x)
    k0 = [SV + 4*i for i in range(4)] + [UL23 + 4*i for i in range(4)] + [UL01]
    k('s_waitcnt lgkmcnt(0)')
    for sg in range(9): kload(k0[sg], vK0, 64*(8-sg))
    items = []
    for cp in range(6):
        for li, base in enumerate((C3B + 32 - 24, C5B + 32 - 32)):
            items.append((trp(vD2, base + 512*cp, 64),
                          lambda b, cp=cp, li=li: [M(cp + 2 + n, b, k32[4 + 3*li + 2 - n]) for n in range(3) if cp + 2 + n <= 7]))
    stream(k, items, RG, 8, 6)
    k.stamp(3)
    k1 = [KX + 4*i for i in range(6)] + [UL01 + 4, UL01 + 8]
    k('s_waitcnt vmcnt(0)')
    for li in range(2):
        for c in range(4): kload(k1[4*li + c], vK1, (R1E - R1O)*li + 64*c)
    k(f'v_mov_b32 v{vT3}, s{sLB}')
    items = []
    for phi in range(-7, 57):
        T = -((-phi) // 8)
        def mm(b, phi=phi, T=T):
            o = [M(T, k0[8*T - phi], b)]
            if phi % 8 == 0 and T + 1 <= 7: o.append(M(T + 1, k0[8], b))
            return o
        if phi <= 0:
            off = U0 + 16 + 64*phi
            items.append((lambda b, off=off: [f'v_add_u32 v{vT2}, {off}, v{vU}', f'v_max_i32 v{vT2}, v{vT3}, v{vT2}', f'ds_read_b128 v[{b}:{b+3}], v{vT2}'], mm))
        else:
            items.append((lambda b, phi=phi: [f'ds_read_b128 v[{b}:{b+3}], v{vU} offset:{U0 + 16 + 64*phi}'], mm))
    stream(k, items, RG, 8, 6)
    k.stamp(4)
    k('s_waitcnt vmcnt(0)')
    items = []
    for cp in range(14):
        for li, base in enumerate((U2B, C3B + 32 - 32)):
            T1 = cp//2 + 1
            def mm(b, cp=cp, li=li, T1=T1):
                o = [M(T1, b, k1[4*li + cp % 2 + 2])]
                if T1 + 1 <= 7: o.append(M(T1 + 1, b, k1[4*li + cp % 2]))
                return o
            items.append((trp(vD1, base + 256*cp, 32), mm))
    stream(k, items, RG, 8, 6)
    k.stamp(5)
    UE = SV
    for T in range(8):
        k(f'ds_read_b64 v[{UE+2*T}:{UE+2*T+1}], v{vEU} offset:{U0 + 512*T}')
    for T in range(8):
        a = ACC + 4*T
        t = RG + 8*(T % 4)
        k(f's_waitcnt lgkmcnt({7-T})')
        unpack4(k, t, UE + 2*T)
        for r in (0, 2):
            k(f'v_pk_mul_f32 v[{t+r}:{t+r+1}], v[{t+r}:{t+r+1}], s[{sDS}:{sDS+1}]')
        rnd_unpack(k, a, t+4)
        rnd_unpack(k, t, t+6)
        for r in (0, 2):
            k(f'v_pk_add_f32 v[{a+r}:{a+r+1}], v[{a+r}:{a+r+1}], v[{t+r}:{t+r+1}]')
        k(f'v_cvt_pk_bf16_f32 v{t+4}, v{a}, v{a+1}')
        k(f'v_cvt_pk_bf16_f32 v{t+5}, v{a+2}, v{a+3}')
        k(f'buffer_store_dwordx2 v[{t+4}:{t+5}], v{vEO}, s[{sAT}:{sAT+3}], 0 offen offset:{512*T}')
    k.stamp_flush(6, 20)
    return 10*CW, 168

if __name__ == '__main__':
    import sys
    st = len(sys.argv) > 1
    ka = KB('ka'); ka.stamps = st and sys.argv[1] == 'a'
    ka('s_cmp_ge_u32 s2, 64'); ka('s_cbranch_scc1 ka_end')
    l1, n1 = kgen_role(ka, 2)
    ka.label('ka_end'); ka('s_endpgm')
    kb = KB('kb'); kb.stamps = st and sys.argv[1] == 'b'
    kb('s_cmp_ge_u32 s2, 64'); kb('s_cbranch_scc1 kb_end')
    l2, n2 = conv_role(kb, 2)
    kb.label('kb_end'); kb('s_endpgm')
    print(l1, n1, l2, n2)
    open('gs2.s', 'w').write(wrap('ssm2 test', [('ka_kernel', 64, 640, l1), ('kb_kernel', 64, 640, l2)], [('ka_kernel', ka.text(), 168, 100), ('kb_kernel', kb.text(), 168, 100)]))
```

```python
import sys
from asmlib import *
from layout import *
import gemm1b, gemm2b, gemm3, ssm2, gate

HEADER = open('gated_mix__ssm_conv_s4__mixer_gmlp__prompt.s.ref').read().split('\n')
HEADER = [l[2:] for l in HEADER if l.startswith('; ') and '@launch' not in l and 'Override' not in l and 'grid=ceil' not in l]

def aux_dispatch(k, name, nact):
    k('s_cmp_ge_u32 s2, 256'); k(f's_cbranch_scc1 {name}_end')
    k('s_sub_u32 s3, s2, 192')
    k('v_lshrrev_b32 v1, 6, v0')
    k('s_nop 0')
    k('v_readfirstlane_b32 s22, v1')
    k('s_nop 3')
    k(f's_cmp_ge_u32 s22, {nact}'); k(f's_cbranch_scc1 {name}_x')

def build(path, st=0):
    k1 = KB('k1'); k1.stamps = st == 1
    k1('s_cmp_ge_u32 s2, 192'); k1('s_cbranch_scc1 k1_aux')
    lds1, nv1 = gemm1b.gemm1b_role(k1)
    k1('s_endpgm')
    k1.label('k1_aux')
    aux_dispatch(k1, 'k1', 10)
    lds1b, nv1b = ssm2.kgen_role(k1, 3)
    k1.label('k1_x'); k1.label('k1_end'); k1('s_endpgm')
    k2 = KB('k2'); k2.stamps = st == 2
    k2('s_cmp_ge_u32 s2, 192'); k2('s_cbranch_scc1 k2_aux')
    lds2, nv2 = gemm2b.gemm2b_role(k2)
    k2('s_endpgm')
    k2.label('k2_aux')
    aux_dispatch(k2, 'k2', 10)
    lds2b, nv2b = ssm2.conv_role(k2, 3)
    k2('s_endpgm')
    k2.label('k2_x')
    k2('s_lshl_b32 s3, s3, 1'); k2('s_add_u32 s3, s3, s22'); k2('s_sub_u32 s3, s3, 10')
    gate.gate_role(k2, 3, 16, 0)
    k2.label('k2_end'); k2('s_endpgm')
    k3 = KB('k3'); k3.stamps = st == 3
    k3('s_cmp_ge_u32 s2, 160'); k3('s_cbranch_scc1 k3_end')
    lds3, nv3 = gemm3.gemm3_role(k3)
    k3.label('k3_end'); k3('s_endpgm')
    launches = [('gm1_kernel', 256, 768, max(lds1, lds1b)), ('gm2_kernel', 256, 768, max(lds2, lds2b)), ('gm3_kernel', 160, 512, lds3)]
    kernels = [('gm1_kernel', k1.text(), 168, 100), ('gm2_kernel', k2.text(), 168, 100), ('gm3_kernel', k3.text(), 168 if st == 3 else nv3, 100)]
    open(path, 'w').write(wrap('\n'.join(HEADER), launches, kernels))

def variants():
    import itertools
    for (lpf, m83, pf0) in ((1,1,2),(2,1,2),(0,1,2)):
        gemm1b.LPF = lpf; gemm1b.MAP83 = m83; ssm2.PF0 = pf0
        build(f'var_{lpf}{m83}{pf0}_s1.s', 1)
if len(sys.argv) > 1 and sys.argv[1] == 'var':
    variants(); sys.exit(0)
if __name__ == '__main__':
    build('gated_mix__ssm_conv_s4__mixer_gmlp__prompt.s')
    build('full.s')
    for st in (1, 2, 3): build(f'full_s{st}.s', st)
```
